```python
import torch

def _softmax(x, axis=-1):
    return torch.softmax(x, dim=axis)
def _gelu(x):
    return torch.nn.functional.gelu(x, approximate="tanh")
def _silu(x):
    return torch.nn.functional.silu(x)
def _sigmoid(x):
    return torch.sigmoid(x)
def _layernorm(x, axis=-1, eps=1e-5):
    m = x.mean(dim=axis, keepdim=True)
    v = x.var(dim=axis, keepdim=True, unbiased=False)
    return (x - m) / torch.sqrt(v + eps)
def _scatter_add(tgt, idx, src, axis=0):
    return tgt.clone().index_add_(axis, idx, src)
def _segment_sum(src, seg, n):
    out = torch.zeros((n,) + src.shape[1:], dtype=src.dtype)
    return out.index_add_(0, seg, src)
def _pad(x, pw):
    flat = tuple(v for pair in reversed(pw) for v in pair)
    return torch.nn.functional.pad(x, flat)

kernel_name = 'parallel_sum__ssm_conv_s5__swiglu_ffn__prompt'

def setup_inputs():

    _w = (lambda a: (lambda t: t.to(torch.bfloat16) if t.is_floating_point() else t)(torch.as_tensor(a)))
    def _A_setup():
        B, S, D = 1, 2048, 640
        P = D
        Lambda_re = -0.5 * (lambda _x: torch.exp(torch.as_tensor(_x)))((lambda *s: torch.randn(*s, dtype=torch.bfloat16) * 0.8)(P))
        Lambda_im = (lambda *s: torch.randn(*s, dtype=torch.bfloat16) * 0.8)(P) * 1.0
        B_re = (lambda *s: torch.randn(*s, dtype=torch.bfloat16) * 0.8)(P, D) * (D ** -0.5)
        B_im = (lambda *s: torch.randn(*s, dtype=torch.bfloat16) * 0.8)(P, D) * (D ** -0.5)
        C_re = (lambda *s: torch.randn(*s, dtype=torch.bfloat16) * 0.8)(D, P) * (P ** -0.5)
        C_im = (lambda *s: torch.randn(*s, dtype=torch.bfloat16) * 0.8)(D, P) * (P ** -0.5)
        log_dt = (lambda *s: torch.randn(*s, dtype=torch.bfloat16) * 0.8)(P) * 0.3 - 2.0
        Dskip = (lambda *s: torch.randn(*s, dtype=torch.bfloat16) * 0.8)(D)
        return {
            "x": _w((lambda *s: torch.randn(*s, dtype=torch.bfloat16) * 0.05)(B, S, D)),
            "Lambda_re": _w(Lambda_re),
            "Lambda_im": _w(Lambda_im),
            "B_re": _w(B_re),
            "B_im": _w(B_im),
            "C_re": _w(C_re),
            "C_im": _w(C_im),
            "log_dt": _w(log_dt),
            "Dskip": _w(Dskip),
        }
    _A_in = _A_setup()

    def _B_setup():
        B, S, D, F = 1, 2048, 640, 1728
        return {
            "x": _w((lambda *s: torch.randn(*s, dtype=torch.bfloat16) * 0.05)(B, S, D)),
            "w_gate": _w((lambda *s: torch.randn(*s, dtype=torch.bfloat16) * 0.05)(D, F)),
            "w_up": _w((lambda *s: torch.randn(*s, dtype=torch.bfloat16) * 0.05)(D, F)),
            "w_down": _w((lambda *s: torch.randn(*s, dtype=torch.bfloat16) * 0.05)(F, D)),
        }
    _B_in = _B_setup()

    return {
        "A_x": _A_in["x"],
        "A_Lambda_re": _A_in["Lambda_re"],
        "A_Lambda_im": _A_in["Lambda_im"],
        "A_B_re": _A_in["B_re"],
        "A_B_im": _A_in["B_im"],
        "A_C_re": _A_in["C_re"],
        "A_C_im": _A_in["C_im"],
        "A_log_dt": _A_in["log_dt"],
        "A_Dskip": _A_in["Dskip"],
        "B_x": _B_in["x"],
        "B_w_gate": _B_in["w_gate"],
        "B_w_up": _B_in["w_up"],
        "B_w_down": _B_in["w_down"],
    }

def reference(A_x, A_Lambda_re, A_Lambda_im, A_B_re, A_B_im, A_C_re, A_C_im, A_log_dt, A_Dskip, B_x, B_w_gate, B_w_up, B_w_down):
    def _A_ref(x, Lambda_re, Lambda_im, B_re, B_im, C_re, C_im, log_dt, Dskip):
        Bsz, L, H = x.shape
        Lam = Lambda_re + 1j * Lambda_im
        Bmat = B_re + 1j * B_im
        Cmat = C_re + 1j * C_im
        dt = torch.exp(log_dt)
        Lam_bar = torch.exp(dt * Lam)
        B_bar = ((Lam_bar - 1.0) / Lam)[:, None] * Bmat
        Bu = torch.einsum("bld,pd->blp", x + 0j, B_bar)
        h = torch.zeros_like(Bu[:, 0, :])
        hs = []
        for t in range(L):
            h = Lam_bar[None, :] * h + Bu[:, t, :]
            hs.append(h)
        hseq = torch.stack(hs, 1)
        y = 2.0 * torch.einsum("blp,dp->bld", hseq, Cmat).real + x * Dskip[None, None, :]
        return y

    def _B_ref(x, w_gate, w_up, w_down):
        g = _silu(x @ w_gate)
        u = x @ w_up
        return (g * u) @ w_down

    x = A_x
    xn = _layernorm(x, axis=-1)
    return x + _A_ref(xn, A_Lambda_re, A_Lambda_im, A_B_re, A_B_im, A_C_re, A_C_im, A_log_dt, A_Dskip) + _B_ref(xn, B_w_gate, B_w_up, B_w_down)
```

```python
class Asm:
    def __init__(self):
        self.lines = []
        self.lg = []; self.lg_done = 0
        self.vm = []; self.vm_done = 0
    def __call__(self, s):
        for l in s.split("\n"):
            l = l.strip()
            if l: self.lines.append(l if l.endswith(":") else "    " + l)
    def ds(self, text, rid=None):
        self(text); self.lg.append(rid)
    def vmem(self, text, rid=None):
        self(text); self.vm.append(rid)
    def _need(self, lst, ids):
        k = 0
        for d in ids:
            assert d in lst, d
            k = max(k, len(lst) - lst[::-1].index(d))
        return k
    def wait_lg(self, ids):
        k = self._need(self.lg, ids)
        if k > self.lg_done:
            cnt = min(len(self.lg) - k, 15)
            self.lg_done = len(self.lg) - cnt
            self(f"s_waitcnt lgkmcnt({cnt})")
    def wait_vm(self, ids, force=False):
        k = self._need(self.vm, ids)
        if k > self.vm_done or force:
            cnt = min(len(self.vm) - k, 63)
            self.vm_done = max(self.vm_done, len(self.vm) - cnt)
            self(f"s_waitcnt vmcnt({cnt})")
    def drain_lg(self):
        self("s_waitcnt lgkmcnt(0)"); self.lg_done = len(self.lg)
    def drain_vm(self):
        self("s_waitcnt vmcnt(0)"); self.vm_done = len(self.vm)
    def snapshot(self): return (list(self.lg), self.lg_done, list(self.vm), self.vm_done)
    def restore(self, s): self.lg, self.lg_done, self.vm, self.vm_done = list(s[0]), s[1], list(s[2]), s[3]
    def text(self):
        return "\n".join(self.lines)

def vr(a, n=1, k='v'):
    return f"{k}{a}" if n == 1 else f"{k}[{a}:{a+n-1}]"
def ar(a, n=1): return vr(a, n, 'a')
def sr(a, n=1): return vr(a, n, 's')

class Sched:
    def __init__(self):
        self.m = []
        self.pre = {}
        self.vec = {}
    def mfma(self, text, lg=(), vm=()):
        self.m.append((text, tuple(lg), tuple(vm))); return len(self.m) - 1
    def scalar(self, g, text): self.pre.setdefault(g, []).append(text)
    def ds(self, g, text, rid=None): self.vec.setdefault(g, []).append(('ds', text, rid))
    def vmem(self, g, text, rid=None): self.vec.setdefault(g, []).append(('vm', text, rid))
    def op(self, g, text): self.vec.setdefault(g, []).append(('x', text, None))
    def call(self, g, fn): self.vec.setdefault(g, []).append(('f', fn, None))
    def load(self, g): return len(self.vec.get(g, []))
    def emit(self, A):
        n = len(self.m)
        for g in range(-1, n):
            if g >= 0: A(self.m[g][0])
            nxt = g + 1
            early = nxt < n and all(d in A.lg for d in self.m[nxt][1]) and all(d in A.vm for d in self.m[nxt][2])
            if early:
                A.wait_lg(self.m[nxt][1]); A.wait_vm(self.m[nxt][2])
            for t in self.pre.get(g, []): A(t)
            for k, t, rid in self.vec.get(g, []):
                if k == 'ds': A.ds(t, rid)
                elif k == 'vm': A.vmem(t, rid)
                elif k == 'f': t(A)
                else: A(t)
            if nxt < n and not early:
                A.wait_lg(self.m[nxt][1]); A.wait_vm(self.m[nxt][2])
```

```python
import sys
from asmlib import *

NAME = "parallel_sum__ssm_conv_s5__swiglu_ffn__prompt"
KNAME = NAME + "_kernel"

WS_STATS = 0x0
WS_CSG = 0x4000
WS_CSU = 0x6000
WS_CSB = 0x8000
WS_FLAGS = 0xA000
WS_FIN = 0x10000
WS_W2P = 0x100000
WS_H = 0x500000
WS_PROF = 0x1200000
WS_SIZE = 0x10000000
SENT = 0x7FA5A5A5

XSLOT = 8192
WBASE = 65536
WSLOT = 20480
SPARE = 126976
SP_W = 9216
LDS_BYTES = 163840

S_X, S_B, S_G, S_U, S_WS, S_T0, S_T1, S_H, S_W2 = 4, 8, 12, 16, 20, 24, 28, 32, 36
S_WAVE, S_RB, S_GID, S_LX, S_LW, S_O0, S_O1, S_KX, S_SP, S_RT, S_SU0, S_JW = range(40, 52)
S_RT2, S_CT, S_OOB, S_SPIN = 52, 53, 54, 55
S_A, S_Bq, S_C, S_D = 56, 57, 58, 59
S_M1, S_M2, S_M3 = 60, 62, 96
P = 64
P_X, P_LRE, P_LIM, P_BRE, P_BIM, P_CRE, P_CIM, P_LDT, P_DSK, P_BX, P_G, P_U, P_WD, P_OUT, P_DBG, P_WS = [P + 2 * i for i in range(16)]
S_ST = 98
S_PROF = 100

V_XD0, V_XD1, V_BD, V_WD0, V_WD1, V_XR0, V_XR1, V_BR0, V_BR1, V_WR = 1, 2, 3, 4, 5, 6, 7, 8, 9, 10
V_L16, V_P = 14, 15
XB, WB, ACC = 16, 48, 96
def accreg(j, i): return ACC + (j * 4 + i) * 4
SPIN_MAX = 200000


class Gen:
    def __init__(self, prof=False, p2map=1):
        self.A = Asm()
        self.prof = prof
        self.p2map = p2map
        self.nlab = 0

    def lab(self, base):
        self.nlab += 1
        return f"L_{base}_{self.nlab}"

    def stamp(self, idx):
        if not self.prof: return
        A = self.A
        A(f"s_memrealtime s[{S_ST}:{S_ST+1}]")
        A.drain_lg()
        A(f"v_writelane_b32 v{self.vprof}, s{S_ST}, {idx}")

    def srd(self, s, base, off=None, size=None, size_reg=None):
        A = self.A
        if off is None:
            A(f"s_mov_b32 s{s}, s{base}\n s_mov_b32 s{s+1}, s{base+1}")
        else:
            A(f"s_add_u32 s{s}, s{base}, {off}\n s_addc_u32 s{s+1}, s{base+1}, 0")
        A(f"s_mov_b32 s{s+2}, {size if size_reg is None else size_reg}\n s_mov_b32 s{s+3}, 0x20000")

    def cmul(self, D, X, Y):
        A = self.A
        A(f"v_pk_mul_f32 {vr(D,2)}, {vr(Y,2)}, {vr(X,2)} op_sel_hi:[1,0]")
        A(f"v_pk_fma_f32 {vr(D,2)}, {vr(Y,2)}, {vr(X,2)}, {vr(D,2)} op_sel:[1,1,0] op_sel_hi:[0,1,1] neg_lo:[1,0,0]")

    def cfma_ops(self, D, X, Y, Z):
        return [f"v_pk_fma_f32 {vr(D,2)}, {vr(Y,2)}, {vr(X,2)}, {vr(Z,2)} op_sel:[1,1,0] op_sel_hi:[0,1,1] neg_lo:[1,0,0]",
                f"v_pk_fma_f32 {vr(D,2)}, {vr(Y,2)}, {vr(X,2)}, {vr(D,2)} op_sel_hi:[1,0,1]"]

    def cfma(self, D, X, Y, Z):
        for t in self.cfma_ops(D, X, Y, Z): self.A(t)

    def prologue(self):
        A = self.A
        A(f"s_cmp_ge_u32 s2, 256\n s_cbranch_scc1 L_end")
        if self.prof: A(f"s_memrealtime s[{S_ST}:{S_ST+1}]")
        A(f"s_load_dwordx16 s[{P}:{P+15}], s[0:1], 0\n s_load_dwordx16 s[{P+16}:{P+31}], s[0:1], 64")
        A(f"v_lshrrev_b32 v16, 6, v0\n v_and_b32 v0, 63, v0\n v_readfirstlane_b32 s{S_WAVE}, v16")
        A(f"""
        s_and_b32 s{S_A}, s2, 1
        s_lshl_b32 s{S_A}, s{S_A}, 2
        s_bfe_u32 s{S_Bq}, s2, 0x20003
        s_add_u32 s{S_RB}, s{S_A}, s{S_Bq}
        s_lshr_b32 s{S_A}, s2, 5
        s_lshl_b32 s{S_A}, s{S_A}, 2
        s_bfe_u32 s{S_Bq}, s2, 0x20001
        s_add_u32 s{S_GID}, s{S_A}, s{S_Bq}
        s_lshl_b32 s{S_RT}, s{S_RB}, 2
        s_add_u32 s{S_RT}, s{S_RT}, s{S_WAVE}
        s_lshl_b32 s{S_JW}, s2, 2
        s_add_u32 s{S_JW}, s{S_JW}, s{S_WAVE}
        s_sub_u32 s{S_A}, s{S_GID}, 27
        s_mul_i32 s{S_A}, s{S_A}, 3
        s_add_u32 s{S_A}, s{S_A}, 27
        s_cmp_lt_u32 s{S_GID}, 27
        s_cselect_b32 s{S_SU0}, s{S_GID}, s{S_A}
        s_lshl_b32 s{S_LX}, s{S_WAVE}, 14
        s_mul_i32 s{S_LW}, s{S_WAVE}, 5120
        s_add_u32 s{S_LW}, s{S_LW}, {WBASE}
        s_mul_i32 s{S_SP}, s{S_WAVE}, {SP_W}
        s_add_u32 s{S_SP}, s{S_SP}, {SPARE}
        s_cmp_eq_u32 s{S_WAVE}, 3
        s_cselect_b32 s{S_OOB}, 0x40000000, 0
        s_mov_b32 s{S_M1}, 0xffff0000
        s_mov_b32 s{S_M1+1}, 0
        s_mov_b32 s{S_M2}, 0
        s_mov_b32 s{S_M2+1}, 0xffff
        s_mov_b32 s{S_M3}, 0
        s_mov_b32 s{S_M3+1}, 0xffff0000
        """)
        if self.p2map == 1:
            A(f"""
            s_and_b32 s{S_A}, s2, 7
            s_lshl_b32 s{S_A}, s{S_A}, 2
            s_bfe_u32 s{S_Bq}, s2, 0x20003
            s_add_u32 s{S_RT2}, s{S_A}, s{S_Bq}
            s_lshr_b32 s{S_CT}, s2, 5
            """)
        else:
            A(f"""
            s_bfe_u32 s{S_A}, s2, 0x20001
            s_lshl_b32 s{S_A}, s{S_A}, 3
            s_bfe_u32 s{S_Bq}, s2, 0x30003
            s_add_u32 s{S_RT2}, s{S_A}, s{S_Bq}
            s_and_b32 s{S_A}, s2, 1
            s_lshl_b32 s{S_A}, s{S_A}, 2
            s_lshr_b32 s{S_Bq}, s2, 6
            s_add_u32 s{S_CT}, s{S_A}, s{S_Bq}
            """)
        A(f"""
        v_lshlrev_b32 v{V_L16}, 4, v0
        v_lshrrev_b32 v16, 3, v0            ; l>>3
        v_and_b32 v17, 7, v0                ; l&7
        v_lshrrev_b32 v18, 4, v0            ; q = l>>4
        v_xor_b32 v19, v17, v18
        v_lshlrev_b32 v19, 4, v19
        v_lshrrev_b32 v20, 5, v0
        v_lshlrev_b32 v20, 4, v20
        v_and_b32 v21, 3, v16
        v_add_u32 v20, v20, v21             ; 16*(l>>5) + ((l>>3)&3)
        v_mul_u32_u24 v20, 1280, v20
        v_add_u32 v{V_XD0}, v20, v19
        v_xor_b32 v{V_XD1}, 64, v{V_XD0}
        v_add_u32 v{V_XD1}, {32*1280 - 1024}, v{V_XD1}
        s_and_b32 s{S_A}, s{S_WAVE}, 1
        s_lshl_b32 s{S_Bq}, s{S_A}, 6
        s_mul_i32 s{S_A}, s{S_A}, {8*1280}
        v_mul_u32_u24 v22, 1280, v16        ; (l>>3)*1280
        v_xor_b32 v23, s{S_Bq}, v19
        v_add3_u32 v{V_BD}, v22, v23, s{S_A}
        v_lshl_add_u32 v47, v17, 4, v22
        v_and_b32 v22, 1, v18
        v_lshlrev_b32 v22, 1, v22
        v_xor_b32 v22, v22, v17
        v_lshlrev_b32 v22, 4, v22
        v_mul_u32_u24 v23, 3456, v16
        v_add_u32 v{V_WD0}, v22, v23
        v_xor_b32 v{V_WD1}, 64, v{V_WD0}
        v_add_u32 v{V_WD1}, {8*3456 - 1024}, v{V_WD1}
        v_lshl_add_u32 v46, v17, 4, v23
        v_and_b32 v22, 15, v0               ; row = l&15
        v_lshrrev_b32 v23, 1, v22
        v_xor_b32 v23, v23, v18
        v_lshlrev_b32 v23, 4, v23
        v_lshl_add_u32 v24, v22, 7, v23
        v_add_u32 v{V_XR0}, s{S_LX}, v24
        v_xor_b32 v{V_XR1}, 64, v{V_XR0}
        v_lshrrev_b32 v25, 3, v22
        v_mul_u32_u24 v25, {5120 - 1024}, v25
        v_add_u32 v24, v24, v25
        v_add_u32 v{V_BR0}, {WBASE}, v24
        v_xor_b32 v{V_BR1}, 64, v{V_BR0}
        v_lshrrev_b32 v23, 2, v22           ; r
        v_and_b32 v24, 3, v0
        v_lshlrev_b32 v24, 3, v24
        v_lshl_add_u32 v24, v23, 7, v24     ; r*128 + 8c
        v_lshrrev_b32 v25, 1, v18
        v_mul_u32_u24 v25, 5120, v25
        v_and_b32 v26, 1, v18
        v_lshl_add_u32 v25, v26, 10, v25
        v_add_u32 v25, v24, v25
        v_lshrrev_b32 v23, 1, v23
        v_lshl_or_b32 v23, v26, 1, v23
        v_lshl_add_u32 v25, v23, 5, v25
        v_add_u32 v{V_WR}, {WBASE}, v25
        v_xor_b32 v{V_WR+1}, 32, v{V_WR}
        v_xor_b32 v{V_WR+2}, 64, v{V_WR}
        v_xor_b32 v{V_WR+3}, 0x60, v{V_WR}
        """)
        A("s_waitcnt lgkmcnt(0)")
        if self.prof:
            A(f"v_mov_b32 v{self.vprof}, 0\n v_writelane_b32 v{self.vprof}, s{S_ST}, 0")
        A(f"s_mul_i32 s{S_A}, s{S_RT}, {64*1280}")
        self.srd(S_X, P_X, f"s{S_A}", 64 * 1280)
        A(f"""
        s_cmp_lt_u32 s{S_WAVE}, 2
        s_cselect_b32 s{S_B}, s{P_BRE}, s{P_BIM}
        s_cselect_b32 s{S_B+1}, s{P_BRE+1}, s{P_BIM+1}
        s_mul_i32 s{S_A}, s{S_SU0}, {16*1280}
        s_add_u32 s{S_B}, s{S_B}, s{S_A}
        s_addc_u32 s{S_B+1}, s{S_B+1}, 0
        s_sub_u32 s{S_B+2}, {640*1280}, s{S_A}
        s_mov_b32 s{S_B+3}, 0x20000
        s_min_u32 s{S_A}, s{S_GID}, 26
        s_lshl_b32 s{S_A}, s{S_A}, 7
        s_mul_i32 s{S_Bq}, s{S_WAVE}, {16*3456}
        s_add_u32 s{S_A}, s{S_A}, s{S_Bq}
        s_sub_u32 s{S_Bq}, {640*3456}, s{S_A}
        """)
        self.srd(S_G, P_G, f"s{S_A}", size_reg=f"s{S_Bq}")
        self.srd(S_U, P_U, f"s{S_A}", size_reg=f"s{S_Bq}")
        self.srd(S_WS, P_WS, None, WS_SIZE)
        A(f"""
        s_mul_i32 s{S_A}, s{S_RT2}, {96*4096}
        s_mul_i32 s{S_Bq}, s{S_WAVE}, {24*4096}
        s_add_u32 s{S_A}, s{S_A}, s{S_Bq}
        s_add_u32 s{S_A}, s{S_A}, {WS_H}
        """)
        self.srd(S_H, P_WS, f"s{S_A}", 24 * 4096)
        A(f"""
        s_mul_i32 s{S_A}, s{S_CT}, {96*5120}
        s_mul_i32 s{S_Bq}, s{S_WAVE}, {24*5120}
        s_add_u32 s{S_A}, s{S_A}, s{S_Bq}
        s_add_u32 s{S_A}, s{S_A}, {WS_W2P}
        """)
        self.srd(S_W2, P_WS, f"s{S_A}", 24 * 5120)

    def colsum_job(self):
        A = self.A
        order = [3, 4, 5, 6, 7, 8, 9, 0, 1, 2]
        Lb, Ld = self.lab("csb"), self.lab("csd")
        A(f"""
        s_mul_i32 s{S_A}, s{S_RB}, 5
        s_add_u32 s{S_A}, s{S_A}, s{S_GID}
        s_sub_u32 s{S_C}, s{S_A}, 27          ; yw
        s_cmp_ge_u32 s{S_C}, 27
        s_cbranch_scc1 {Lb}
        s_cmp_lt_u32 s{S_WAVE}, 2
        s_cselect_b32 s{S_T0}, s{P_G}, s{P_U}
        s_cselect_b32 s{S_T0+1}, s{P_G+1}, s{P_U+1}
        s_and_b32 s{S_A}, s{S_WAVE}, 1
        s_mul_i32 s{S_A}, s{S_A}, {32*3456}
        s_lshl_b32 s{S_Bq}, s{S_C}, 7
        s_add_u32 s{S_A}, s{S_A}, s{S_Bq}
        s_add_u32 s{S_T0}, s{S_T0}, s{S_A}
        s_addc_u32 s{S_T0+1}, s{S_T0+1}, 0
        s_sub_u32 s{S_T0+2}, {640*3456}, s{S_A}
        s_mov_b32 s{S_T0+3}, 0x20000
        """)
        snap = A.snapshot()
        for n, s in enumerate(order):
            for k in range(4):
                A(f"s_mov_b32 s{S_O0}, {(64*s + 8*k) * 3456}")
                A.vmem(f"buffer_load_dwordx4 {vr(96 + 16*n + 4*k, 4)}, v46, s[{S_T0}:{S_T0+3}], s{S_O0} offen", ('cs', n, k))
        A(f"s_mov_b32 s{S_A}, 0x00003f80\n s_mov_b32 s{S_Bq}, 0x3f800000")
        for e in range(8): A(f"v_mov_b32 v{16+e}, 0")
        for n in range(10):
            for k in range(4):
                A.wait_vm([('cs', n, k)])
                for e in range(4):
                    r = 96 + 16*n + 4*k + e
                    A(f"v_dot2_f32_bf16 v{16+2*e}, v{r}, s{S_A}, v{16+2*e}\n v_dot2_f32_bf16 v{17+2*e}, v{r}, s{S_Bq}, v{17+2*e}")
        A(f"v_lshlrev_b32 v24, 5, v0\n v_add_u32 v24, s{S_SP}, v24\n s_nop 1")
        A.ds(f"ds_write_b128 v24, v[16:19] offset:6144")
        A.ds(f"ds_write_b128 v24, v[20:23] offset:6160")
        A.drain_lg()
        A(f"s_barrier\n s_cmp_ge_u32 s{S_WAVE}, 2\n s_cbranch_scc1 {Ld}")
        A(f"s_mul_i32 s{S_A}, s{S_WAVE}, {2*SP_W}\n s_add_u32 s{S_A}, s{S_A}, {SPARE}\n v_lshl_add_u32 v24, v0, 2, s{S_A}")
        for h in range(2):
            for k in range(8):
                A.ds(f"ds_read_b32 v{96 + 8*h + k}, v24 offset:{6144 + h*SP_W + k*256}")
        A.drain_lg()
        for st in (8, 4, 2, 1):
            for k in range(st): A(f"v_add_f32 v{96+k}, v{96+k}, v{96+k+st}")
        A(f"""
        s_lshl_b32 s{S_A}, s{S_WAVE}, 13
        s_lshl_b32 s{S_Bq}, s{S_C}, 8
        s_add_u32 s{S_A}, s{S_A}, s{S_Bq}
        s_add_u32 s{S_A}, s{S_A}, {WS_CSG}
        v_lshlrev_b32 v24, 2, v0
        buffer_store_dword v96, v24, s[{S_WS}:{S_WS+3}], s{S_A} offen sc1
        s_branch {Ld}
        """)
        A.restore(snap)
        A(f"""
        {Lb}:
        s_cmp_ge_u32 s{S_C}, 37
        s_cbranch_scc1 {Ld}
        s_sub_u32 s{S_C}, s{S_C}, 27
        s_lshl_b32 s{S_C}, s{S_C}, 2
        s_add_u32 s{S_C}, s{S_C}, s{S_WAVE}   ; idx 0..39
        s_cmp_lt_u32 s{S_C}, 20
        s_cselect_b32 s{S_T0}, s{P_BRE}, s{P_BIM}
        s_cselect_b32 s{S_T0+1}, s{P_BRE+1}, s{P_BIM+1}
        s_cselect_b32 s{S_A}, 0, 20
        s_cselect_b32 s{S_D}, 0, 0x1000
        s_add_u32 s{S_D}, s{S_D}, {WS_CSB}
        s_sub_u32 s{S_C}, s{S_C}, s{S_A}
        s_mul_i32 s{S_A}, s{S_C}, {32*1280}
        s_add_u32 s{S_T0}, s{S_T0}, s{S_A}
        s_addc_u32 s{S_T0+1}, s{S_T0+1}, 0
        s_mov_b32 s{S_T0+2}, {32*1280}
        s_mov_b32 s{S_T0+3}, 0x20000
        """)
        for n, s in enumerate(order):
            for k in range(4):
                A(f"s_mov_b32 s{S_O0}, {k*8*1280 + s*128}")
                A.vmem(f"buffer_load_dwordx4 {vr(96 + 16*n + 4*k, 4)}, v47, s[{S_T0}:{S_T0+3}], s{S_O0} offen", ('cb', n, k))
        A(f"s_mov_b32 s{S_A}, 0x3f803f80")
        for e in range(4): A(f"v_mov_b32 v{16+e}, 0")
        for n in range(10):
            for k in range(4):
                A.wait_vm([('cb', n, k)])
                for e in range(4):
                    A(f"v_dot2_f32_bf16 v{16+k}, v{96 + 16*n + 4*k + e}, s{S_A}, v{16+k}")
        A("s_nop 2")
        for dpp in ("quad_perm:[1,0,3,2]", "quad_perm:[2,3,0,1]", "row_half_mirror"):
            for k in range(4): A(f"v_add_f32_dpp v{16+k}, v{16+k}, v{16+k} {dpp} row_mask:0xf bank_mask:0xf")
        A(f"""
        s_lshl_b32 s{S_C}, s{S_C}, 7
        s_add_u32 s{S_D}, s{S_D}, s{S_C}
        v_lshrrev_b32 v24, 3, v0
        v_lshlrev_b32 v24, 2, v24
        s_mov_b32 exec_lo, 0x01010101
        s_mov_b32 exec_hi, 0x01010101
        """)
        for k in range(4):
            A(f"buffer_store_dword v{16+k}, v24, s[{S_WS}:{S_WS+3}], s{S_D} offen offset:{32*k} sc1")
        A(f"s_mov_b64 exec, -1\n {Ld}:")
        A.restore(snap)

    def job_loads(self, nunits):
        A = self.A
        A(f"""
        s_cmp_lt_u32 s{S_JW}, 540
        s_cselect_b32 s{S_A}, 0, 540
        s_cselect_b32 s{S_T0}, s{P_WD}, s{P_CRE}
        s_cselect_b32 s{S_T0+1}, s{P_WD+1}, s{P_CRE+1}
        s_cselect_b32 s{S_T1}, s{P_WD}, s{P_CIM}
        s_cselect_b32 s{S_T1+1}, s{P_WD+1}, s{P_CIM+1}
        s_cselect_b32 s{S_O1}, {16*1280}, 0
        s_add_u32 s{S_O0}, s{S_O1}, {16*1280}
        s_sub_u32 s{S_A}, s{S_JW}, s{S_A}
        s_min_u32 s{S_A}, s{S_A}, 539
        s_mul_i32 s{S_C}, s{S_A}, 6554
        s_lshr_b32 s{S_C}, s{S_C}, 16
        s_mul_i32 s{S_Bq}, s{S_C}, 10
        s_sub_u32 s{S_D}, s{S_A}, s{S_Bq}      ; a
        s_mul_i32 s{S_A}, s{S_C}, s{S_O0}
        s_lshl_b32 s{S_Bq}, s{S_D}, 7
        s_add_u32 s{S_A}, s{S_A}, s{S_Bq}
        s_cmp_lt_u32 s{S_JW}, 940
        s_cselect_b32 s{S_A}, s{S_A}, 0
        s_cselect_b32 s{S_T0+2}, {15*1280 + 128}, 0
        s_cselect_b32 s{S_T1+2}, {15*1280 + 128}, 0
        s_add_u32 s{S_T0}, s{S_T0}, s{S_A}
        s_addc_u32 s{S_T0+1}, s{S_T0+1}, 0
        s_add_u32 s{S_A}, s{S_A}, s{S_O1}
        s_add_u32 s{S_T1}, s{S_T1}, s{S_A}
        s_addc_u32 s{S_T1+1}, s{S_T1+1}, 0
        s_mov_b32 s{S_T0+3}, 0x20000
        s_mov_b32 s{S_T1+3}, 0x20000
        s_mov_b32 s{S_O0}, {8*1280}
        s_mov_b32 m0, s{S_SP}
        s_nop 0
        """)
        A.vmem(f"buffer_load_dwordx4 v47, s[{S_T0}:{S_T0+3}], 0 offen lds", 'jw0')
        A(f"s_add_u32 m0, s{S_SP}, 1024\n s_nop 0")
        A.vmem(f"buffer_load_dwordx4 v47, s[{S_T0}:{S_T0+3}], s{S_O0} offen lds", 'jw1')
        A(f"s_add_u32 m0, s{S_SP}, 2048\n s_nop 0")
        A.vmem(f"buffer_load_dwordx4 v47, s[{S_T1}:{S_T1+3}], 0 offen lds", 'jw2')
        A(f"s_add_u32 m0, s{S_SP}, 3072\n s_nop 0")
        A.vmem(f"buffer_load_dwordx4 v47, s[{S_T1}:{S_T1+3}], s{S_O0} offen lds", 'jw3')
        A(f"s_mul_i32 s{S_A}, s{S_JW}, 2560")
        self.srd(S_T0, P_X, f"s{S_A}", 2560)
        A(f"""
        v_lshrrev_b32 v16, 5, v0
        v_mul_u32_u24 v16, 1280, v16
        v_and_b32 v17, 31, v0
        v_lshl_add_u32 v16, v17, 4, v16
        v_mov_b32 v18, 0x7fff0000
        v_cmp_gt_u32 vcc, 16, v17
        v_and_b32 v19, 15, v0
        s_lshl_b32 s{S_A}, s{S_SU0}, 5
        v_cndmask_b32 v18, v18, v16, vcc
        v_lshl_add_u32 v19, v19, 1, s{S_A}
        """)
        A.vmem(f"buffer_load_dwordx4 v[96:99], v16, s[{S_T0}:{S_T0+3}], 0 offen", 'st0')
        A.vmem(f"buffer_load_dwordx4 v[100:103], v16, s[{S_T0}:{S_T0+3}], 0 offen offset:512", 'st1')
        A.vmem(f"buffer_load_dwordx4 v[104:107], v18, s[{S_T0}:{S_T0+3}], 0 offen offset:1024", 'st2')
        for k, ptr in enumerate((P_LRE, P_LIM, P_LDT)):
            self.srd(S_T1, ptr, None, 1280)
            for u in range(nunits):
                A.vmem(f"buffer_load_ushort v{112 + 3*u + k}, v19, s[{S_T1}:{S_T1+3}], 0 offen offset:{32*u}", ('lam', u, k))

    def job_compute(self, nunits, cbase):
        A = self.A
        Ls, Lst, Ln = self.lab("jS"), self.lab("jst"), self.lab("jn")
        A.wait_vm([('lam', nunits - 1, 2)])
        A(f"s_cmp_ge_u32 s{S_JW}, 540\n s_cbranch_scc1 {Ls}")
        A(f"""
        v_lshrrev_b32 v32, 2, v0              ; 4q + r
        v_and_b32 v33, 3, v0
        v_lshlrev_b32 v33, 3, v33
        v_lshl_add_u32 v32, v32, 7, v33
        v_add_u32 v32, s{S_SP}, v32
        """)
        for t in range(4):
            A(f"ds_read_b64_tr_b16 {vr(16+4*t,2)}, v32 offset:{32*t}\n ds_read_b64_tr_b16 {vr(18+4*t,2)}, v32 offset:{2048 + 32*t}")
        A(f"""
        s_lshr_b32 s{S_A}, s{S_C}, 1           ; g
        s_and_b32 s{S_Bq}, s{S_C}, 1           ; jp
        s_mul_i32 s{S_Bq}, s{S_Bq}, 7
        s_lshr_b32 s{S_O0}, s{S_A}, 2
        s_add_u32 s{S_Bq}, s{S_Bq}, s{S_O0}
        s_and_b32 s{S_A}, s{S_A}, 3
        s_mul_i32 s{S_A}, s{S_A}, 24
        s_add_u32 s{S_A}, s{S_A}, s{S_Bq}      ; step'
        s_mul_i32 s{S_A}, s{S_A}, 5120
        s_add_u32 s{S_A}, s{S_A}, {WS_W2P}
        s_lshl_b32 s{S_D}, s{S_D}, 2           ; T0 = 4a
        s_waitcnt lgkmcnt(0)
        """)
        for t in range(4):
            A(f"""
            s_mul_i32 s{S_Bq}, s{S_D}, 52
            s_lshr_b32 s{S_Bq}, s{S_Bq}, 8     ; ct = T/5
            s_mul_i32 s{S_O0}, s{S_Bq}, {96*5120 - 5*1024}
            s_lshl_b32 s{S_O1}, s{S_D}, 10
            s_add_u32 s{S_O0}, s{S_O0}, s{S_O1}
            s_add_u32 s{S_O0}, s{S_O0}, s{S_A}
            buffer_store_dwordx4 {vr(16+4*t,4)}, v{V_L16}, s[{S_WS}:{S_WS+3}], s{S_O0} offen sc1
            s_add_u32 s{S_D}, s{S_D}, 1
            """)
        A(f"s_branch {Ln}\n {Ls}:")
        A(f"""
        v_and_b32 v32, 15, v0
        v_lshrrev_b32 v33, 4, v0
        v_lshlrev_b32 v33, 3, v33
        v_lshl_add_u32 v32, v32, 7, v33
        v_add_u32 v32, s{S_SP}, v32
        """)
        for u in range(4):
            A(f"ds_read_b64 {vr(128+4*u,2)}, v32 offset:{32*u}\n ds_read_b64 {vr(130+4*u,2)}, v32 offset:{2048 + 32*u}")
        A(f"""
        s_mul_i32 s{S_Bq}, s{S_C}, 52
        s_lshr_b32 s{S_Bq}, s{S_Bq}, 8         ; ct
        s_mul_i32 s{S_O0}, s{S_Bq}, {96*5120 - 5*1024}
        s_lshl_b32 s{S_O1}, s{S_C}, 10
        s_add_u32 s{S_O0}, s{S_O0}, s{S_O1}
        s_add_u32 s{S_D}, s{S_D}, 14
        s_mul_i32 s{S_D}, s{S_D}, 5120
        s_add_u32 s{S_O0}, s{S_O0}, s{S_D}
        s_add_u32 s{S_O0}, s{S_O0}, {WS_W2P}
        s_cmp_lt_u32 s{S_JW}, 940
        s_cselect_b32 s{S_O0}, s{S_O0}, 0x40000000
        s_mov_b32 s{S_A}, 0x05040100
        s_mov_b32 s{S_Bq}, 0x07060302
        s_waitcnt lgkmcnt(0)
        """)
        for u in range(4):
            for k in range(4):
                A(f"v_perm_b32 v{16+4*u+k}, v{130+4*u+(k>>1)}, v{128+4*u+(k>>1)}, s{S_A if k % 2 == 0 else S_Bq}")
            A(f"buffer_store_dwordx4 {vr(16+4*u,4)}, v{V_L16}, s[{S_WS}:{S_WS+3}], s{S_O0} offen sc1\n s_add_u32 s{S_O0}, s{S_O0}, {24*5120}")
        A(f"{Ln}:")
        A.vm += [None] * 4
        A(f"s_mov_b32 s{S_A}, 0x3f803f80\n v_mov_b32 v32, 0")
        for r in range(12): A(f"v_dot2_f32_bf16 v32, v{96+r}, s{S_A}, v32")
        def red32(v, t):
            A("s_nop 2")
            for dpp in ("quad_perm:[1,0,3,2]", "quad_perm:[2,3,0,1]", "row_half_mirror", "row_mirror"):
                A(f"v_add_f32_dpp v{v}, v{v}, v{v} {dpp} row_mask:0xf bank_mask:0xf\n s_nop 1")
            A(f"v_mov_b32 v{t}, v{v}\n s_nop 1\n v_permlane16_swap_b32 v{v}, v{t}\n s_nop 0\n v_add_f32 v{v}, v{v}, v{t}")
        red32(32, 33)
        A(f"v_mul_f32 v32, {-1.0/640.0!r}, v32          ; -mean")
        A(f"s_mov_b32 s{S_A}, 0xffff0000\n v_mov_b32 v34, 0\n v_mov_b32 v35, 0\n v_mov_b32 v36, 0\n v_mov_b32 v37, 0")
        for r in range(12):
            acc = 34 if r < 8 else 36
            t = 38 + 2 * (r & 1)
            A(f"""
            v_lshlrev_b32 v{t}, 16, v{96+r}
            v_and_b32 v{t+1}, s{S_A}, v{96+r}
            v_pk_add_f32 {vr(t,2)}, {vr(t,2)}, v[32:33] op_sel_hi:[1,0]
            v_pk_fma_f32 {vr(acc,2)}, {vr(t,2)}, {vr(t,2)}, {vr(acc,2)}
            """)
        A(f"""
        v_and_b32 v38, 31, v0
        v_cmp_gt_u32 vcc, 16, v38
        v_add_f32 v36, v36, v37
        v_add_f32 v34, v34, v35
        v_cndmask_b32 v36, 0, v36, vcc
        v_add_f32 v34, v34, v36
        """)
        red32(34, 35)
        A(f"""
        v_mul_f32 v34, {1.0/640.0!r}, v34
        v_cvt_pk_bf16_f32 v34, v34, v32
        v_and_b32 v32, s{S_A}, v34
        v_lshlrev_b32 v34, 16, v34
        v_add_f32 v34, 0x3727c5ac, v34         ; + 1e-5
        v_cvt_pk_bf16_f32 v34, v34, v34
        v_lshlrev_b32 v34, 16, v34
        v_sqrt_f32 v34, v34
        s_nop 0
        v_cvt_pk_bf16_f32 v34, v34, v34
        v_lshlrev_b32 v34, 16, v34
        v_rcp_f32 v33, v34
        v_lshrrev_b32 v35, 5, v0
        v_lshlrev_b32 v35, 3, v35
        s_lshl_b32 s{S_A}, s{S_JW}, 4
        s_mov_b32 exec_lo, 1
        s_mov_b32 exec_hi, 1
        """)
        A.vmem(f"buffer_store_dwordx2 v[32:33], v35, s[{S_WS}:{S_WS+3}], s{S_A} offen sc1")
        A(f"""
        s_mov_b64 exec, 1
        v_mov_b32 v36, 0
        s_lshl_b32 s{S_A}, s{S_RT}, 5
        s_add_u32 s{S_A}, s{S_A}, s{S_GID}
        s_lshl_b32 s{S_A}, s{S_A}, 2
        s_add_u32 s{S_A}, s{S_A}, {WS_FLAGS}
        """)
        A.vmem(f"buffer_store_dword v36, v36, s[{S_WS}:{S_WS+3}], s{S_A} offen sc1")
        A(f"""
        s_mov_b64 exec, 0xffff
        v_mov_b32 v36, {SENT:#x}
        v_mov_b32 v37, {SENT:#x}
        v_lshlrev_b32 v38, 3, v0
        s_lshl_b32 s{S_A}, s{S_SU0}, 5
        s_add_u32 s{S_A}, s{S_A}, s{S_RT}
        s_lshl_b32 s{S_A}, s{S_A}, 7
        s_add_u32 s{S_A}, s{S_A}, {WS_FIN}
        """)
        for u in range(nunits):
            A.vmem(f"buffer_store_dwordx2 v[36:37], v38, s[{S_WS}:{S_WS+3}], s{S_A} offen sc1", ('init', u))
            if u + 1 < nunits: A(f"s_add_u32 s{S_A}, s{S_A}, 4096")
        A("s_mov_b64 exec, -1")

    def s_consts(self, nunits, cbase):
        A = self.A
        for u in range(nunits):
            c = cbase[u]
            LAM, CA, L16, L64, L16Q, L512Q = c, c + 2, c + 4, c + 6, c + 8, c + 10
            s = 112 + 3 * u
            A(f"""
            v_lshlrev_b32 v16, 16, v{s}            ; Lambda_re
            v_lshlrev_b32 v17, 16, v{s+1}          ; Lambda_im
            v_lshlrev_b32 v18, 16, v{s+2}
            v_mul_f32 v18, 0x3fb8aa3b, v18
            v_exp_f32 v18, v18
            s_nop 0
            v_cvt_pk_bf16_f32 v18, v18, v18
            v_lshlrev_b32 v18, 16, v18
            v_mul_f32 v19, v18, v16
            v_mul_f32 v20, v18, v17
            v_mul_f32 v19, 0x3fb8aa3b, v19
            v_mul_f32 v20, 0.15915494, v20
            v_exp_f32 v19, v19
            v_rndne_f32 v21, v20
            v_sub_f32 v20, v20, v21
            v_cos_f32 v21, v20
            v_sin_f32 v22, v20
            v_mul_f32 v23, v16, v16
            v_fmac_f32 v23, v17, v17
            v_mul_f32 v{LAM}, v19, v21
            v_mul_f32 v{LAM+1}, v19, v22
            v_rcp_f32 v23, v23
            v_add_f32 v24, -1.0, v{LAM}
            v_mov_b32 v25, v{LAM+1}
            v_add_f32 v23, v23, v23
            v_mul_f32 v26, v16, v23
            v_mul_f32 v27, -v17, v23               ; 2*conj(Lam)/|Lam|^2
            """)
            self.cmul(CA, 24, 26)
            self.cmul(16, LAM, LAM)
            self.cmul(18, 16, 16)
            self.cmul(16, 18, 18)
            self.cmul(L16, 16, 16)
            self.cmul(18, L16, L16)
            self.cmul(20, L16, 18)
            self.cmul(L64, 18, 18)
            self.cmul(16, L64, L64)
            self.cmul(22, 16, 16)
            self.cmul(16, 22, 22)
            self.cmul(22, 16, 16)
            self.cmul(24, 16, 22)
            for k in range(2):
                one = "1.0" if k == 0 else "0"
                A(f"""
                v_cndmask_b32 v{L16Q+k}, {one}, v{L16+k}, s[{S_M1}:{S_M1+1}]
                v_cndmask_b32 v{L16Q+k}, v{L16Q+k}, v{18+k}, s[{S_M2}:{S_M2+1}]
                v_cndmask_b32 v{L16Q+k}, v{L16Q+k}, v{20+k}, s[{S_M3}:{S_M3+1}]
                v_cndmask_b32 v{L512Q+k}, v{24+k}, v{22+k}, s[{S_M1}:{S_M1+1}]
                v_cndmask_b32 v{L512Q+k}, v{L512Q+k}, v{16+k}, s[{S_M2}:{S_M2+1}]
                v_cndmask_b32 v{L512Q+k}, v{L512Q+k}, {one}, s[{S_M3}:{S_M3+1}]
                """)

    def dma_ops(self, s, isx):
        slot = s % 3
        wl = slot * WSLOT
        w, x = [], []
        if isx:
            w.append(([f"s_mov_b32 s{S_O0}, {s*64*3456}", f"s_add_u32 m0, s{S_LW}, {wl + 1024}"], f"buffer_load_dwordx4 v{V_WD0}, s[{S_G}:{S_G+3}], s{S_O0} offen lds"))
            w.append(([], f"buffer_load_dwordx4 v{V_WD1}, s[{S_G}:{S_G+3}], s{S_O0} offen offset:1024 lds"))
            w.append(([f"s_add_u32 m0, s{S_LW}, {wl + 3072}"], f"buffer_load_dwordx4 v{V_WD0}, s[{S_U}:{S_U+3}], s{S_O0} offen lds"))
            w.append(([], f"buffer_load_dwordx4 v{V_WD1}, s[{S_U}:{S_U+3}], s{S_O0} offen offset:1024 lds"))
        for u in range(1 if isx else 3):
            so = S_O1 if u % 2 == 0 else S_O0
            w.append(([f"s_mov_b32 s{so}, {s*128 + u*16*1280}", f"s_add_u32 m0, s{S_LW}, {wl + 1024*u}"], f"buffer_load_dwordx4 v{V_BD}, s[{S_B}:{S_B+3}], s{so} offen lds"))
        for i in range(4):
            so = S_O0 if i % 2 == 0 else S_O1
            x.append(([f"s_mov_b32 s{so}, {s*128 + 4*i*1280}", f"s_add_u32 m0, s{S_LX}, {(s % 2)*XSLOT + i*2048}"], f"buffer_load_dwordx4 v{V_XD0}, s[{S_X}:{S_X+3}], s{so} offen lds"))
            x.append(([], f"buffer_load_dwordx4 v{V_XD1}, s[{S_X}:{S_X+3}], s{so} offen offset:1024 lds"))
        return w, x

    def dma_stage_now(self, s, isx):
        A = self.A
        w, x = self.dma_ops(s, isx)
        for k, (sc, d) in enumerate(w + x):
            for t in reversed(sc): A(t)
            if len(sc) == 1: A("s_nop 0")
            A.vmem(d, ('dma', s, k))
        return ('dma', s, len(w) + len(x) - 1)

    def wreads(self, n, isx):
        NJ = 10 if isx else 6
        step, j = divmod(n, NJ); s, kh = divmod(step, 2); slot = s % 3
        d = WB + (n % 4) * 4
        if not isx or j < 2:
            a = V_BR0 if kh == 0 else V_BR1
            u, c = divmod(j, 2)
            return [(f"ds_read_b128 {vr(d,4)}, v{a} offset:{slot*WSLOT + c*10240 + u*1024}", ('w', n, 0))]
        t, isu = divmod(j - 2, 2)
        off = slot * WSLOT + kh * 10240 + 1024 + isu * 2048
        return [(f"ds_read_b64_tr_b16 {vr(d,2)}, v{V_WR + t} offset:{off}", ('w', n, 0)),
                (f"ds_read_b64_tr_b16 {vr(d+2,2)}, v{V_WR + t} offset:{off + 512}", ('w', n, 1))]

    def xreads(self, step):
        s, kh = divmod(step, 2)
        a = V_XR0 if kh == 0 else V_XR1
        return [(f"ds_read_b128 {vr(XB + (step % 2)*16 + i*4, 4)}, v{a} offset:{(s % 2)*XSLOT + i*2048}", ('x', step, i)) for i in range(4)]

    def w2_load(self, n, j):
        d = (n % 12) * 20 + j * 4
        sc = []
        if j == 0:
            sc = [f"s_add_u32 s{S_KX}, s{S_OOB}, {n*5120}"] if n in (6, 13) else [f"s_mov_b32 s{S_KX}, {n*5120}"]
        if j == 4:
            sc = [f"s_add_u32 s{S_KX}, s{S_KX}, 1024"]
        off = j * 1024 if j < 4 else 3072
        return sc, f"buffer_load_dwordx4 {ar(d,4)}, v{V_L16}, s[{S_W2}:{S_W2+3}], s{S_KX} offen offset:{off} sc1", ('w2', n, j)

    def poll_init_issue(self, A):
        self.srd(S_T0, P_DBG, None, 256)
        A(f"v_and_b32 v{V_P}, 3, v0\n v_lshlrev_b32 v{V_P}, 6, v{V_P}")
        A.vmem(f"buffer_load_dword v95, v{V_P}, s[{S_T0}:{S_T0+3}], 0 offen sc1", 'pollinit')

    def poll_init_check(self, A):
        Lok, Lp = self.lab("iok"), self.lab("ip")
        A.wait_vm(['pollinit'])
        A(f"""
        v_cmp_ne_u32 vcc, 64, v95
        s_mov_b32 s{S_SPIN}, 0
        s_cbranch_vccz {Lok}
        {Lp}:
        buffer_load_dword v95, v{V_P}, s[{S_T0}:{S_T0+3}], 0 offen sc1
        s_add_u32 s{S_SPIN}, s{S_SPIN}, 1
        s_cmp_gt_u32 s{S_SPIN}, {SPIN_MAX}
        s_cbranch_scc1 {Lok}
        s_waitcnt vmcnt(0)
        v_cmp_ne_u32 vcc, 64, v95
        s_nop 0
        s_cbranch_vccnz {Lp}
        {Lok}:
        """)

    def arrive(self, A):
        self.srd(S_T0, P_DBG, None, 256)
        A(f"""
        s_and_b32 s{S_A}, s2, 3
        s_lshl_b32 s{S_A}, s{S_A}, 6
        s_cmp_eq_u32 s{S_WAVE}, 0
        s_cselect_b32 s{S_A}, s{S_A}, 0x40000000
        v_mov_b32 v94, 1
        v_mov_b32 v95, 0
        s_mov_b64 exec, 1
        """)
        A.vmem(f"buffer_atomic_add v94, v95, s[{S_T0}:{S_T0+3}], s{S_A} offen")
        A("s_mov_b64 exec, -1")

    def stage_dma(self, A, nunits):
        A(f"""
        s_lshl_b32 s{S_A}, s{S_RT}, 9
        s_min_u32 s{S_Bq}, s{S_GID}, 26
        s_lshl_b32 s{S_Bq}, s{S_Bq}, 8
        s_add_u32 s{S_C}, s{S_Bq}, {WS_CSG - 512}
        s_add_u32 s{S_D}, s{S_Bq}, {WS_CSU - 768}
        v_mov_b32 v92, s{S_A}
        v_mov_b32 v93, s{S_C}
        v_mov_b32 v94, s{S_D}
        v_cndmask_b32 v92, v92, v93, s[{S_M2}:{S_M2+1}]
        v_cndmask_b32 v92, v92, v94, s[{S_M3}:{S_M3+1}]
        v_add_u32 v92, v92, v{V_L16}
        s_add_u32 m0, s{S_SP}, 4096
        v_lshrrev_b32 v93, 3, v0              ; u
        v_bfe_u32 v94, v0, 2, 1               ; comp
        v_lshlrev_b32 v93, 6, v93
        v_lshl_add_u32 v93, v94, 12, v93
        v_and_b32 v94, 3, v0
        v_lshl_add_u32 v93, v94, 4, v93
        s_lshl_b32 s{S_A}, s{S_SU0}, 6
        s_add_u32 s{S_A}, s{S_A}, {WS_CSB - 1024}
        """)
        A.vmem(f"buffer_load_dwordx4 v92, s[{S_WS}:{S_WS+3}], 0 offen sc1 lds", 'stg0')
        A.vmem(f"buffer_load_dwordx4 v93, s[{S_WS}:{S_WS+3}], s{S_A} offen offset:1024 sc1 lds", 'stg1')

    def main1(self, isx):
        A = self.A
        NJ = 10 if isx else 6
        NF = 20 * NJ
        S = Sched()
        for t, rid in self.xreads(0): S.ds(-1, t, rid)
        for n in range(3):
            for t, rid in self.wreads(n, isx): S.ds(-1, t, rid)
        w2q = [(n, j) for n in range(12) for j in range(5)]
        nd = 13 if isx else 11
        for step in range(20):
            s, kh = divmod(step, 2)
            for j in range(NJ):
                n = step * NJ + j
                w = vr(WB + (n % 4) * 4, 4)
                for i in range(4):
                    x = vr(XB + (step % 2) * 16 + i * 4, 4)
                    acc = vr(accreg(j, i), 4)
                    c = acc if step else "0"
                    isS = (not isx) or j < 2
                    a, b = (x, w) if isS else (w, x)
                    deps = [('x', step, i), ('w', n, 0)] + ([] if isS else [('w', n, 1)])
                    S.mfma(f"v_mfma_f32_16x16x32_bf16 {acc}, {a}, {b}, {c}", deps)
                g0 = n * 4
                if kh == 1 and j == NJ - 3 and s < 9:
                    def bar(A, s=s):
                        A.wait_vm([('dma', s + 1, nd - 1)], force=True)
                        A("s_barrier")
                        if s == 0: self.arrive(A)
                        if s == 6: self.poll_init_issue(A)
                        if s == 7:
                            self.poll_init_check(A)
                            self.stage_dma(A, 1 if isx else 3)
                    S.call(g0 - 1, bar)
                if n + 3 < NF:
                    for k, (t, rid) in enumerate(self.wreads(n + 3, isx)): S.ds(g0 + k, t, rid)
                if j in (NJ - 3, NJ - 2) and step < 19:
                    h = j - (NJ - 3)
                    for k, (t, rid) in enumerate(self.xreads(step + 1)[h*2:h*2 + 2]): S.ds(g0 + 2 + k, t, rid)
            if kh == 0 and s <= 7:
                w, x = self.dma_ops(s + 2, isx)
                base = step * NJ * 4
                if isx:
                    pos = [4*g + 2 for g in (0, 1, 2, 3, 4)] + [4*g + 2 for g in (9, 10, 11, 12, 13, 14, 15, 16)]
                else:
                    pos = [2, 6, 10] + [22, 23, 26, 27, 30, 31, 33, 34]
                for k, ((sc, d), p) in enumerate(zip(w + x, pos)):
                    for kk, t in enumerate(sc): S.scalar(base + p - len(sc) + kk, t)
                    S.vmem(base + p, d, ('dma', s + 2, k))
            if s >= 8:
                for j in range(NJ):
                    if j in (NJ - 3, NJ - 2) and step < 19: continue
                    n_, j_ = w2q.pop(0)
                    sc, t, rid = self.w2_load(n_, j_)
                    g = (step * NJ + j) * 4 + 2
                    for tt in sc: S.scalar(g - 1, tt)
                    S.vmem(g, t, rid)
        S.emit(A)
        A("s_barrier")
        self.w2q = w2q

    def w2_more(self, k):
        A = self.A
        for _ in range(min(k, len(self.w2q))):
            n_, j_ = self.w2q.pop(0)
            sc, t, rid = self.w2_load(n_, j_)
            for tt in sc: A(tt)
            A.vmem(t, rid)

    def s_stats_read(self, regs):
        A = self.A
        A.wait_vm(['stg1'])
        A(f"v_lshrrev_b32 v1, 4, v0\n v_lshlrev_b32 v1, 7, v1\n v_add_u32 v1, s{S_SP}, v1")
        A(f"v_and_b32 v2, 15, v0\n v_lshl_add_u32 v2, v2, 2, s{S_SP}")
        for i in range(4):
            A.ds(f"ds_read_b128 {vr(regs[i],4)}, v1 offset:{4096 + 32*i}", ('ss', i, 0))
            A.ds(f"ds_read_b128 {vr(regs[i]+4,4)}, v1 offset:{4096 + 32*i + 16}", ('ss', i, 1))

    def s_part_a(self, u, ub, c, st, T, CQ):
        A = self.A
        LAM, CA, L16 = c, c + 2, c + 4
        A.ds(f"ds_read_b32 v{T}, v2 offset:{5120 + 128*u}", ('csb', u, 0))
        A.ds(f"ds_read_b32 v{T+1}, v2 offset:{5120 + 128*u + 64}", ('csb', u, 1))
        A.wait_lg([('csb', u, 1)])
        CCS = T + 2
        self.cmul(CCS, CA, T)
        for i in range(4):
            re, im = accreg(2*u, i), accreg(2*u + 1, i)
            for k in range(4):
                for r in range(4):
                    U = vr(ub + 2*(4*i + r), 2); sp = vr(st[i] + 2*r, 2); b = r & 1
                    if k == 0: A(f"v_pk_mul_f32 {U}, {vr(CCS,2)}, {sp} op_sel_hi:[1,0]")
                    elif k == 1: A(f"v_pk_fma_f32 {U}, {vr(CA,2)}, {vr(re + (r & 2),2)}, {U} op_sel:[0,{b},0] op_sel_hi:[1,{b},1]")
                    elif k == 2: A(f"v_pk_fma_f32 {U}, {vr(CA,2)}, {vr(im + (r & 2),2)}, {U} op_sel:[1,{b},0] op_sel_hi:[0,{b},1] neg_lo:[1,0,0]")
                    else: A(f"v_pk_mul_f32 {U}, {U}, {sp} op_sel:[0,1] op_sel_hi:[1,1]")
        cur = ub
        for tau in range(1, 16):
            nxt = T + 2 * (tau & 1)
            self.cfma(nxt, LAM, cur, ub + 2*tau)
            cur = nxt
        F, B, C, D = cur, T + 4, T + 6, T + 8
        A(f"v_mov_b32 v{B}, v{F}\n v_mov_b32 v{B+1}, v{F+1}\n s_nop 0")
        A(f"v_permlane16_swap_b32 v{F}, v{B}\n v_permlane16_swap_b32 v{F+1}, v{B+1}")
        A(f"v_mov_b32 v{C}, v{F}\n v_mov_b32 v{D}, v{B}\n v_mov_b32 v{C+1}, v{F+1}\n v_mov_b32 v{D+1}, v{B+1}\n s_nop 0")
        A(f"v_permlane32_swap_b32 v{F}, v{C}\n v_permlane32_swap_b32 v{B}, v{D}\n v_permlane32_swap_b32 v{F+1}, v{C+1}\n v_permlane32_swap_b32 v{B+1}, v{D+1}")
        self.cfma(B, L16, F, B)
        self.cfma(C, L16, B, C)
        self.cfma(D, L16, C, D)
        A(f"""
        s_add_u32 s{S_A}, s{S_SU0}, {u}
        s_lshl_b32 s{S_A}, s{S_A}, 5
        s_add_u32 s{S_A}, s{S_A}, s{S_RT}
        s_lshl_b32 s{S_A}, s{S_A}, 7
        s_add_u32 s{S_A}, s{S_A}, {WS_FIN}
        v_lshlrev_b32 v{T}, 3, v0
        s_mov_b64 exec, 0xffff
        """)
        A.vmem(f"buffer_store_dwordx2 {vr(D,2)}, v{T}, s[{S_WS}:{S_WS+3}], s{S_A} offen sc1")
        A("s_mov_b64 exec, -1")
        for k in range(2):
            A(f"""
            v_cndmask_b32 v{CQ+k}, 0, v{F+k}, s[{S_M1}:{S_M1+1}]
            v_cndmask_b32 v{CQ+k}, v{CQ+k}, v{B+k}, s[{S_M2}:{S_M2+1}]
            v_cndmask_b32 v{CQ+k}, v{CQ+k}, v{C+k}, s[{S_M3}:{S_M3+1}]
            """)

    def fin_addr(self, VA):
        A = self.A
        A(f"""
        v_lshrrev_b32 v{VA}, 4, v0
        v_lshlrev_b32 v{VA}, 10, v{VA}
        v_and_b32 v{VA+1}, 15, v0
        v_lshl_add_u32 v{VA}, v{VA+1}, 3, v{VA}
        s_lshl_b32 s{S_A}, s{S_RT}, 7
        s_sub_u32 s{S_A}, s{S_A}, 4096
        v_add_u32 v{VA}, s{S_A}, v{VA}
        """)
        for e in range(1, 8): A(f"v_add_u32 v{VA+e}, {128*e}, v{VA}")

    def fin_issue(self, u, VA, R):
        A = self.A
        A(f"s_add_u32 s{S_A}, s{S_SU0}, {u}\n s_lshl_b32 s{S_A}, s{S_A}, 12\n s_add_u32 s{S_A}, s{S_A}, {WS_FIN}")
        self.srd(S_T0, P_WS, f"s{S_A}", 4096)
        for e in range(8):
            A.vmem(f"buffer_load_dwordx2 {vr(R + 2*e, 2)}, v{VA+e}, s[{S_T0}:{S_T0+3}], 0 offen sc1", ('fin', u, e))

    def s_part_b(self, u, ub, c, CQ, VA, R, T, hoff_reg):
        A = self.A
        LAM, L64, L16Q, L512Q = c, c + 6, c + 8, c + 10
        Lh, Lok = self.lab("fh"), self.lab("fok")
        A.wait_vm([('fin', u, 7)])
        A(f"s_mov_b32 s{S_SPIN}, 0\n {Lh}:")
        cur = R
        for e in range(1, 8):
            nxt = T + 2 * (e & 1)
            self.cfma(nxt, L64, cur, R + 2*e)
            cur = nxt
        A(f"v_cmp_u_f32 vcc, v{cur}, v{cur+1}\n s_mov_b32 s{S_A}, {SENT:#x}\n s_cbranch_vccz {Lok}")
        A(f"s_mov_b64 s[{S_C}:{S_C+1}], 0")
        for k in range(16):
            A(f"v_cmp_eq_u32 vcc, s{S_A}, v{R+k}\n s_or_b64 s[{S_C}:{S_C+1}], s[{S_C}:{S_C+1}], vcc")
        A(f"s_cbranch_scc0 {Lok}\n s_add_u32 s{S_SPIN}, s{S_SPIN}, 1\n s_cmp_gt_u32 s{S_SPIN}, {SPIN_MAX}\n s_cbranch_scc1 {Lok}")
        for e in range(8):
            A(f"buffer_load_dwordx2 {vr(R + 2*e, 2)}, v{VA+e}, s[{S_T0}:{S_T0+3}], 0 offen sc1")
        A(f"s_waitcnt vmcnt(0)\n s_branch {Lh}\n {Lok}:")
        G, G2 = T, T + 4
        self.cmul(G, L512Q, cur)
        A(f"v_mov_b32 v{G2}, v{G}\n v_mov_b32 v{G2+1}, v{G+1}\n s_nop 0")
        A(f"v_permlane16_swap_b32 v{G}, v{G2}\n v_permlane16_swap_b32 v{G+1}, v{G2+1}\n s_nop 0")
        A(f"v_pk_add_f32 {vr(G,2)}, {vr(G,2)}, {vr(G2,2)}")
        A(f"v_mov_b32 v{G2}, v{G}\n v_mov_b32 v{G2+1}, v{G+1}\n s_nop 0")
        A(f"v_permlane32_swap_b32 v{G}, v{G2}\n v_permlane32_swap_b32 v{G+1}, v{G2+1}\n s_nop 0")
        A(f"v_pk_add_f32 {vr(G,2)}, {vr(G,2)}, {vr(G2,2)}")
        self.cfma(CQ, L16Q, G, CQ)
        prev = CQ
        for tau in range(16):
            U = ub + 2 * tau
            self.cfma(U, LAM, prev, U)
            if tau > 0:
                i, r = divmod(tau - 1, 4)
                A(f"v_cvt_pk_bf16_f32 v{R + tau - 1}, v{prev}, -v{prev+1}")
                A.ds(f"ds_write_b32 v3, v{R + tau - 1} offset:{i*1024 + r*64}", ('tw', u, tau - 1))
            prev = U
        A(f"v_cvt_pk_bf16_f32 v{R + 15}, v{prev}, -v{prev+1}")
        A.ds(f"ds_write_b32 v3, v{R + 15} offset:{3*1024 + 3*64}", ('tw', u, 15))
        for i in range(4):
            A.ds(f"ds_read_b128 {vr(ub + 4*i, 4)}, v4 offset:{i*1024}", ('tr', u, i))
        for i in range(4):
            A.wait_lg([('tr', u, i)])
            A.vmem(f"buffer_store_dwordx4 {vr(ub + 4*i, 4)}, v{V_L16}, s[{S_WS}:{S_WS+3}], s{hoff_reg} offen offset:{i*1024} sc1", ('hs', u, i))

    def s_tr_addr(self):
        self.A(f"""
        v_lshrrev_b32 v3, 4, v0
        v_and_b32 v5, 15, v0
        v_lshlrev_b32 v4, 4, v3
        v_lshl_add_u32 v4, v5, 6, v4
        v_add_u32 v4, s{S_SP}, v4
        v_lshlrev_b32 v3, 8, v3
        v_lshl_add_u32 v3, v5, 2, v3
        v_add_u32 v3, s{S_SP}, v3              ; write: q*256 + p*4
        """)

    def s_hoff(self, u, reg):
        self.A(f"""
        s_add_u32 s{S_A}, s{S_SU0}, {u}
        s_and_b32 s{S_Bq}, s{S_A}, 3
        s_mul_i32 s{S_Bq}, s{S_Bq}, 24
        s_lshr_b32 s{S_A}, s{S_A}, 2
        s_add_u32 s{S_A}, s{S_A}, s{S_Bq}
        s_mul_i32 s{S_Bq}, s{S_RT}, 96
        s_add_u32 s{S_A}, s{S_A}, s{S_Bq}
        s_lshl_b32 s{S_A}, s{S_A}, 12
        s_add_u32 s{reg}, s{S_A}, {WS_H + 14*4096}
        """)

    def f_setup(self, PS, QS):
        A = self.A
        A(f"""
        v_bfe_u32 v5, v0, 2, 2
        v_and_b32 v6, 3, v0
        v_lshl_add_u32 v5, v5, 4, v6
        v_lshl_add_u32 v5, v5, 3, s{S_SP}
        v_lshrrev_b32 v6, 4, v0
        v_lshl_add_u32 v6, v6, 4, s{S_SP}
        """)
        for i in range(4): A.ds(f"ds_read_b64 {vr(PS + 2*i, 2)}, v5 offset:{4096 + 32*i}", ('fs', i))
        A(f"""
        s_and_b32 s{S_A}, s{S_GID}, 3
        s_mul_i32 s{S_A}, s{S_A}, 24
        s_lshr_b32 s{S_Bq}, s{S_GID}, 2
        s_add_u32 s{S_A}, s{S_A}, s{S_Bq}
        s_mul_i32 s{S_Bq}, s{S_RT}, 96
        s_add_u32 s{S_A}, s{S_A}, s{S_Bq}
        s_lshl_b32 s{S_A}, s{S_A}, 12
        s_add_u32 s{S_O0}, s{S_A}, {WS_H}
        s_add_u32 s{S_O1}, s{S_O0}, {7*4096}
        """)
        A.wait_lg([('fs', 3)])
        for i in range(4): A(f"v_mul_f32 v{QS+i}, v{PS+2*i+1}, v{PS+2*i+1}")
        for i in range(4): A(f"v_rcp_f32 v{QS+i}, v{QS+i}")
        for i in range(4): A(f"v_mul_f32 v{PS+2*i+1}, 0xbfb8aa3b, v{PS+2*i+1}")

    def f_cs_read(self, jp, CS):
        A = self.A
        for h in range(2):
            t = 2 * jp + h
            A.ds(f"ds_read_b128 {vr(CS + 8*h, 4)}, v6 offset:{4096 + 512 + 64*t}", ('fc', jp, h, 0))
            A.ds(f"ds_read_b128 {vr(CS + 8*h + 4, 4)}, v6 offset:{4096 + 768 + 64*t}", ('fc', jp, h, 1))

    def f_part(self, jp, PS, QS, CS, E, extra=None):
        A = self.A
        A.wait_lg([('fc', jp, 1, 1)])
        for i in range(4):
            items = []
            for h in range(2):
                t = 2 * jp + h
                for rp in range(2):
                    items.append((accreg(2 + 2*t, i) + 2*rp, accreg(3 + 2*t, i) + 2*rp, CS + 8*h + 2*rp, CS + 8*h + 4 + 2*rp, E + 2*(2*h + rp)))
            Pp = vr(PS + 2*i, 2); Q = vr(QS + (i & 2), 2); b = i & 1
            O = accreg(2 + 4*jp, i)
            for G, U, cg, cu, e in items: A(f"v_pk_fma_f32 {vr(G,2)}, {vr(cg,2)}, {Pp}, {vr(G,2)} op_sel_hi:[1,0,1]")
            for G, U, cg, cu, e in items: A(f"v_pk_mul_f32 {vr(e,2)}, {vr(G,2)}, {Pp} op_sel:[0,1] op_sel_hi:[1,1]")
            for G, U, cg, cu, e in items: A(f"v_exp_f32 v{e}, v{e}\n v_exp_f32 v{e+1}, v{e+1}")
            for G, U, cg, cu, e in items: A(f"v_pk_fma_f32 {vr(U,2)}, {vr(cu,2)}, {Pp}, {vr(U,2)} op_sel_hi:[1,0,1]")
            for G, U, cg, cu, e in items: A(f"v_pk_fma_f32 {vr(e,2)}, {vr(e,2)}, {Q}, {Q} op_sel:[0,{b},{b}] op_sel_hi:[1,{b},{b}]")
            for G, U, cg, cu, e in items: A(f"v_rcp_f32 v{e}, v{e}\n v_rcp_f32 v{e+1}, v{e+1}")
            for G, U, cg, cu, e in items: A(f"v_pk_mul_f32 {vr(U,2)}, {vr(U,2)}, {vr(G,2)}")
            for G, U, cg, cu, e in items: A(f"v_pk_mul_f32 {vr(U,2)}, {vr(U,2)}, {vr(e,2)}")
            for k, (G, U, cg, cu, e) in enumerate(items): A(f"v_cvt_pk_bf16_f32 v{O+k}, v{U}, v{U+1}")
            A.vmem(f"buffer_store_dwordx4 {vr(O,4)}, v{V_L16}, s[{S_WS}:{S_WS+3}], s{S_O0 if jp == 0 else S_O1} offen offset:{i*1024} sc1", ('hf', jp, i))
            if extra: extra(jp, i)

    def publish(self):
        A = self.A
        A(f"""
        s_lshl_b32 s{S_A}, s{S_RT}, 5
        s_add_u32 s{S_A}, s{S_A}, s{S_GID}
        s_lshl_b32 s{S_A}, s{S_A}, 2
        s_add_u32 s{S_A}, s{S_A}, {WS_FLAGS}
        v_mov_b32 v1, 1
        v_mov_b32 v2, 0
        """)
        A.drain_vm()
        A("s_mov_b64 exec, 1")
        A.vmem(f"buffer_store_dword v1, v2, s[{S_WS}:{S_WS+3}], s{S_A} offen sc1")
        A("s_mov_b64 exec, -1")

    def body_x(self):
        A = self.A
        cb = [64]
        self.job_loads(1)
        d0 = self.dma_stage_now(0, True)
        self.job_compute(1, cb)
        self.dma_stage_now(1, True)
        self.s_consts(1, cb)
        self.stamp(1)
        A.wait_vm([d0], force=True)
        A("s_barrier")
        self.stamp(2)
        self.main1(True)
        self.stamp(3)
        st = [48, 56, 76, 84]
        self.s_stats_read(st)
        A.wait_lg([('ss', 3, 1)])
        CQ = 92
        self.s_part_a(0, 16, 64, st, 4, CQ)
        self.w2_more(6)
        PS, QS, CS, E = 48, 56, 96, 112
        self.f_setup(PS, QS)
        self.f_cs_read(0, CS)
        VA, R = 76, 128
        def extra(jp, i):
            self.w2_more(3)
            if jp == 1 and i == 1:
                self.fin_addr(VA)
                self.fin_issue(0, VA, 144)
        self.f_part(0, PS, QS, CS, E, extra)
        self.f_cs_read(1, CS)
        self.f_part(1, PS, QS, CS, E, extra)
        self.stamp(4)
        self.s_tr_addr()
        self.s_hoff(0, S_O0)
        self.s_part_b(0, 16, 64, CQ, VA, 144, 84, S_O0)
        self.w2_more(100)
        self.stamp(5)
        self.publish()

    def body_y(self):
        A = self.A
        cb = [64, 192, 204]
        self.colsum_job()
        self.job_loads(3)
        d0 = self.dma_stage_now(0, False)
        self.job_compute(3, cb)
        self.dma_stage_now(1, False)
        self.s_consts(3, cb)
        self.stamp(1)
        A.wait_vm([d0], force=True)
        A("s_barrier")
        self.stamp(2)
        self.main1(False)
        self.stamp(3)
        st = [48, 56, 76, 84]
        self.s_stats_read(st)
        A.wait_lg([('ss', 3, 1)])
        ubs = [16, 96, 128]
        CQs = [216, 218, 220]
        for u in range(3):
            self.s_part_a(u, ubs[u], cb[u], st, 224, CQs[u])
            self.w2_more(8)
        self.w2_more(100)
        self.stamp(4)
        VA = 76
        self.fin_addr(VA)
        self.s_tr_addr()
        Ld = self.lab("yd")
        for u in range(3):
            if u: A(f"s_add_u32 s{S_A}, s{S_SU0}, {u}\n s_cmp_ge_u32 s{S_A}, 40\n s_cbranch_scc1 {Ld}")
            self.fin_issue(u, VA, 160)
            self.s_hoff(u, S_O0)
            self.s_part_b(u, ubs[u], cb[u], CQs[u], VA, 160, 84, S_O0)
        A(f"{Ld}:")
        self.stamp(5)
        self.publish()

    def phase2(self):
        A = self.A
        HD = 6
        HB, AC2, BS = 80, 176, 16
        A.vm = [('w2', n, j) for n in range(12) for j in range(5)] + ['flagst']; A.vm_done = 60
        A.lg = []; A.lg_done = 0
        A(f"""
        v_lshrrev_b32 v1, 2, v0               ; rho
        v_and_b32 v2, 3, v0                   ; c
        v_lshrrev_b32 v3, 2, v1
        v_and_b32 v4, 3, v1
        v_lshl_add_u32 v3, v3, 4, v4
        s_lshl_b32 s{S_A}, s{S_WAVE}, 2
        s_lshl_b32 s{S_Bq}, s{S_RT2}, 6
        s_add_u32 s{S_A}, s{S_A}, s{S_Bq}
        v_add_u32 v3, s{S_A}, v3
        v_lshlrev_b32 v5, 3, v3
        s_mul_i32 s{S_A}, s{S_CT}, 160
        v_lshl_add_u32 v6, v2, 3, s{S_A}
        v_mul_u32_u24 v7, 1280, v3
        v_add_u32 v7, v7, v6                  ; x offset
        v_lshlrev_b32 v8, 1, v7
        """)
        self.srd(S_T0, P_X, None, 2048 * 1280)
        self.srd(S_T1, P_DSK, None, 1280)
        A.vmem(f"buffer_load_dwordx2 v[36:37], v5, s[{S_WS}:{S_WS+3}], 0 offen sc1", 'e_st')
        for j in range(5):
            A.vmem(f"buffer_load_dwordx2 {vr(40 + 2*j, 2)}, v7, s[{S_T0}:{S_T0+3}], 0 offen offset:{32*j}", ('e_x', j))
            A.vmem(f"buffer_load_dwordx2 {vr(50 + 2*j, 2)}, v6, s[{S_T1}:{S_T1+3}], 0 offen offset:{32*j}", ('e_d', j))
        Lp, Lok = self.lab("hp"), self.lab("hok")
        A(f"""
        v_and_b32 v9, 31, v0
        v_lshlrev_b32 v9, 2, v9
        s_lshl_b32 s{S_C}, s{S_RT2}, 7
        s_add_u32 s{S_C}, s{S_C}, {WS_FLAGS}
        """)
        A(f"""
        v_and_b32 v10, 15, v0
        v_lshrrev_b32 v11, 4, v0
        v_bfe_u32 v12, v0, 1, 2
        v_xor_b32 v11, v11, v12
        v_mul_u32_u24 v10, 320, v10
        v_lshl_add_u32 v10, v11, 4, v10
        s_mul_i32 s{S_A}, s{S_WAVE}, 20480
        v_add_u32 v10, s{S_A}, v10
        v_bfe_u32 v12, v1, 1, 2
        v_xor_b32 v12, v12, v2
        v_mul_u32_u24 v11, 320, v1
        v_lshl_add_u32 v11, v12, 4, v11
        s_mul_i32 s{S_A}, s{S_WAVE}, 5120
        v_add_u32 v11, s{S_A}, v11
        v_add_u32 v12, 61440, v11             ; wave 3
        s_mov_b32 s{S_A}, 0xffff0000
        """)
        A.wait_vm([('e_d', 4)])
        for j in range(5):
            for h in range(2):
                xr, dr, o = 40 + 2*j + h, 50 + 2*j + h, BS + 4*j + 2*h
                A(f"""
                v_lshlrev_b32 v{o}, 16, v{xr}
                v_and_b32 v{o+1}, s{S_A}, v{xr}
                v_lshlrev_b32 v60, 16, v{dr}
                v_and_b32 v61, s{S_A}, v{dr}
                v_pk_add_f32 v[62:63], {vr(o,2)}, v[36:37] op_sel_hi:[1,0]
                v_pk_mul_f32 v[62:63], v[62:63], v[36:37] op_sel:[0,1] op_sel_hi:[1,1]
                v_pk_fma_f32 {vr(o,2)}, v[62:63], v[60:61], {vr(o,2)}
                """)
        self.srd(S_T0, P_OUT, None, 2048 * 2560)
        A(f"""
        s_mov_b32 s{S_SPIN}, 0
        {Lp}:
        buffer_load_dword v13, v9, s[{S_WS}:{S_WS+3}], s{S_C} offen sc1
        s_add_u32 s{S_SPIN}, s{S_SPIN}, 1
        s_cmp_gt_u32 s{S_SPIN}, {SPIN_MAX}
        s_cbranch_scc1 {Lok}
        s_waitcnt vmcnt(0)
        v_cmp_ne_u32 vcc, 1, v13
        s_nop 0
        s_cbranch_vccnz {Lp}
        {Lok}:
        """)
        self.stamp(6)
        def h_load(n, i):
            sc = []
            so = S_O0 if n % 2 == 0 else S_O1
            if i == 0:
                sc = [f"s_add_u32 s{so}, s{S_OOB}, {n*4096}"] if n in (6, 13) else [f"s_mov_b32 s{so}, {n*4096}"]
            d = HB + (n % HD) * 16 + 4 * i
            return sc, f"buffer_load_dwordx4 {vr(d,4)}, v{V_L16}, s[{S_H}:{S_H+3}], s{so} offen offset:{i*1024} sc1", ('h', n, i)
        for n in range(HD - 1):
            for i in range(4):
                sc, t, rid = h_load(n, i)
                for tt in sc: A(tt)
                A.vmem(t, rid)
        S = Sched()
        NT = 3
        def mf(n, i, j):
            acc = vr(AC2 + (j*4 + i)*4, 4)
            c = acc if n else "0"
            return S.mfma(f"v_mfma_f32_16x16x32_bf16 {acc}, {ar((n % 12)*20 + 4*j, 4)}, {vr(HB + (n % HD)*16 + 4*i, 4)}, {c}", (), [('h', n, i), ('w2', n, j)])
        for n in range(24 - NT):
            g0 = len(S.m)
            for i in range(4):
                for j in range(5): mf(n, i, j)
            ops = []
            if n + HD - 1 < 24: ops += [h_load(n + HD - 1, i) for i in range(4)]
            if n >= 1 and n + 11 < 24: ops += [self.w2_load(n + 11, j) for j in range(5)]
            for k, (sc, t, rid) in enumerate(ops):
                g = g0 + 1 + 2 * k
                for tt in sc: S.scalar(g - 1, tt)
                S.vmem(g, t, rid)
        pend = []
        for i in range(4):
            for j in range(5):
                for n in range(24 - NT, 24): g = mf(n, i, j)
                pend.append((g, i, j))
        nm = len(S.m)
        late = []
        for g, i, j in pend:
            t = f"ds_write_b128 v10, {vr(AC2 + (j*4 + i)*4, 4)} offset:{i*5120 + j*64}"
            if g + 8 < nm: S.ds(g + 8, t, ('pw', i, j))
            else: late.append((t, ('pw', i, j)))
        S.emit(A)
        A("s_nop 7")
        for t, rid in late: A.ds(t, rid)
        A.drain_lg()
        A("s_barrier")
        self.stamp(7)
        for j in range(5):
            for w in range(4):
                d = 80 + (j*4 + w) * 4
                if w < 3: A.ds(f"ds_read_b128 {vr(d,4)}, v11 offset:{w*20480 + j*64}", ('pr', j, w))
                else: A.ds(f"ds_read_b128 {vr(d,4)}, v12 offset:{j*64}", ('pr', j, w))
        for j in range(5):
            A.wait_lg([('pr', j, 3)])
            d = 80 + j * 16; o = BS + 4 * j
            for h in (0, 2):
                A(f"v_pk_add_f32 {vr(d+h,2)}, {vr(d+h,2)}, {vr(d+4+h,2)}\n v_pk_add_f32 {vr(d+8+h,2)}, {vr(d+8+h,2)}, {vr(d+12+h,2)}")
            for h in (0, 2):
                A(f"v_pk_add_f32 {vr(o+h,2)}, {vr(o+h,2)}, {vr(d+h,2)}")
            for h in (0, 2):
                A(f"v_pk_add_f32 {vr(o+h,2)}, {vr(o+h,2)}, {vr(d+8+h,2)}")
            A.vmem(f"buffer_store_dwordx4 {vr(o,4)}, v8, s[{S_T0}:{S_T0+3}], 0 offen offset:{64*j} sc1")
        if self.prof:
            self.stamp(8)
            A.drain_vm()
            self.stamp(9)
            A(f"s_lshl_b32 s{S_A}, s{S_JW}, 8\n s_add_u32 s{S_A}, s{S_A}, {WS_PROF}\n v_lshlrev_b32 v1, 2, v0")
            A(f"v_accvgpr_read_b32 v2, a255" if False else "s_nop 0")
            A(f"buffer_store_dword v{self.vprof}, v1, s[{S_WS}:{S_WS+3}], s{S_A} offen")

    def build(self):
        A = self.A
        self.vprof = 79 if False else 15
        if self.prof:
            global V_P
            V_P = 94
        self.prologue()
        A(f"s_cmp_ge_u32 s{S_GID}, 27\n s_cbranch_scc1 L_y")
        snap = A.snapshot()
        self.body_x()
        A("L_p2:")
        self.phase2()
        A("L_end:\n s_endpgm")
        A.restore(snap)
        A("L_y:")
        self.body_y()
        A("s_branch L_p2")
        head = open("cdna_kernels/" + NAME + ".s.ref").read().split("; Override launch")[0]
        return f"""{head}; One persistent launch: 256 workgroups x 4 waves, one per CU (file generated by a script).
; @launch grid=(256,1,1) block=(256,1,1) lds={LDS_BYTES}
.amdgcn_target "amdgcn-amd-amdhsa--gfx950"
.text
.globl {KNAME}
.p2align 8
.type {KNAME},@function
{KNAME}:
{A.text()}
.section .rodata,"a"
.p2align 6
.amdhsa_kernel {KNAME}
  .amdhsa_next_free_vgpr 512
  .amdhsa_next_free_sgpr 102
  .amdhsa_accum_offset 256
  .amdhsa_group_segment_fixed_size 0
  .amdhsa_kernarg_size 128
  .amdhsa_user_sgpr_count 2
  .amdhsa_user_sgpr_kernarg_segment_ptr 1
  .amdhsa_system_sgpr_workgroup_id_x 1
  .amdhsa_float_denorm_mode_32 3
.end_amdhsa_kernel
"""


if __name__ == "__main__":
    out = sys.argv[1] if len(sys.argv) > 1 else "k.s"
    kw = {}
    for a in sys.argv[2:]:
        k, v = a.split("=")
        kw[k] = int(v)
    open(out, "w").write(Gen(**kw).build())
```

```python
import sys
from asmlib import *

NAME = "parallel_sum__ssm_conv_s5__swiglu_ffn__prompt"
KNAME = NAME + "_kernel"

WS_STATS = 0x0
WS_CSG = 0x4000
WS_CSU = 0x6000
WS_CSB = 0x8000
WS_FLAGS = 0xA000
WS_FIN = 0x10000
WS_W2P = 0x100000
WS_H = 0x500000
WS_PROF = 0x1200000
WS_SIZE = 0x10000000
SENT = 0x7FA5A5A5

XSLOT = 8192
WBASE = 65536
WSLOT = 20480
SPARE = 126976
SP_W = 9216
LDS_BYTES = 163840

S_X, S_B, S_G, S_U, S_WS, S_T0, S_T1, S_H, S_W2 = 4, 8, 12, 16, 20, 24, 28, 32, 36
S_WAVE, S_RB, S_GID, S_LX, S_LW, S_O0, S_O1, S_KX, S_SP, S_RT, S_SU0, S_JW = range(40, 52)
S_RT2, S_CT, S_OOB, S_SPIN = 52, 53, 54, 55
S_A, S_Bq, S_C, S_D = 56, 57, 58, 59
S_M1, S_M2, S_M3 = 60, 62, 96
P = 64
P_X, P_LRE, P_LIM, P_BRE, P_BIM, P_CRE, P_CIM, P_LDT, P_DSK, P_BX, P_G, P_U, P_WD, P_OUT, P_DBG, P_WS = [P + 2 * i for i in range(16)]
S_ST = 98
S_PROF = 100

V_XD0, V_XD1, V_BD, V_WD0, V_WD1, V_XR0, V_XR1, V_BR0, V_BR1, V_WR = 1, 2, 3, 4, 5, 6, 7, 8, 9, 10
V_L16, V_P = 14, 15
XB, WB, ACC = 16, 48, 96
def accreg(j, i): return ACC + (j * 4 + i) * 4
SPIN_MAX = 200000


class Gen:
    def __init__(self, prof=False, p2map=1, amp=-1, who=0):
        self.A = Asm()
        self.prof = prof
        self.p2map = p2map
        self.amp = amp; self.who = who
        if amp >= 0: self.prof = True
        self.nlab = 0

    def lab(self, base):
        self.nlab += 1
        return f"L_{base}_{self.nlab}"

    def stamp(self, idx):
        if not self.prof: return
        A = self.A
        A(f"s_memrealtime s[{S_ST}:{S_ST+1}]")
        A.drain_lg()
        A(f"v_writelane_b32 v{self.vprof}, s{S_ST}, {idx}")

    def srd(self, s, base, off=None, size=None, size_reg=None):
        A = self.A
        if off is None:
            A(f"s_mov_b32 s{s}, s{base}\n s_mov_b32 s{s+1}, s{base+1}")
        else:
            A(f"s_add_u32 s{s}, s{base}, {off}\n s_addc_u32 s{s+1}, s{base+1}, 0")
        A(f"s_mov_b32 s{s+2}, {size if size_reg is None else size_reg}\n s_mov_b32 s{s+3}, 0x20000")

    def cmul(self, D, X, Y):
        A = self.A
        A(f"v_pk_mul_f32 {vr(D,2)}, {vr(Y,2)}, {vr(X,2)} op_sel_hi:[1,0]")
        A(f"v_pk_fma_f32 {vr(D,2)}, {vr(Y,2)}, {vr(X,2)}, {vr(D,2)} op_sel:[1,1,0] op_sel_hi:[0,1,1] neg_lo:[1,0,0]")

    def cfma_ops(self, D, X, Y, Z):
        return [f"v_pk_fma_f32 {vr(D,2)}, {vr(Y,2)}, {vr(X,2)}, {vr(Z,2)} op_sel:[1,1,0] op_sel_hi:[0,1,1] neg_lo:[1,0,0]",
                f"v_pk_fma_f32 {vr(D,2)}, {vr(Y,2)}, {vr(X,2)}, {vr(D,2)} op_sel_hi:[1,0,1]"]

    def cfma(self, D, X, Y, Z):
        for t in self.cfma_ops(D, X, Y, Z): self.A(t)

    def prologue(self):
        A = self.A
        A(f"s_cmp_ge_u32 s2, 256\n s_cbranch_scc1 L_end")
        if self.prof: A(f"s_memrealtime s[{S_ST}:{S_ST+1}]")
        A(f"s_load_dwordx16 s[{P}:{P+15}], s[0:1], 0\n s_load_dwordx16 s[{P+16}:{P+31}], s[0:1], 64")
        A(f"v_lshrrev_b32 v16, 6, v0\n v_and_b32 v0, 63, v0\n v_readfirstlane_b32 s{S_WAVE}, v16")
        A(f"""
        s_and_b32 s{S_A}, s2, 1
        s_lshl_b32 s{S_A}, s{S_A}, 2
        s_bfe_u32 s{S_Bq}, s2, 0x20003
        s_add_u32 s{S_RB}, s{S_A}, s{S_Bq}
        s_lshr_b32 s{S_A}, s2, 5
        s_lshl_b32 s{S_A}, s{S_A}, 2
        s_bfe_u32 s{S_Bq}, s2, 0x20001
        s_add_u32 s{S_GID}, s{S_A}, s{S_Bq}
        s_lshl_b32 s{S_RT}, s{S_RB}, 2
        s_add_u32 s{S_RT}, s{S_RT}, s{S_WAVE}
        s_lshl_b32 s{S_JW}, s2, 2
        s_add_u32 s{S_JW}, s{S_JW}, s{S_WAVE}
        s_sub_u32 s{S_A}, s{S_GID}, 27
        s_mul_i32 s{S_A}, s{S_A}, 3
        s_add_u32 s{S_A}, s{S_A}, 27
        s_cmp_lt_u32 s{S_GID}, 27
        s_cselect_b32 s{S_SU0}, s{S_GID}, s{S_A}
        s_lshl_b32 s{S_LX}, s{S_WAVE}, 14
        s_mul_i32 s{S_LW}, s{S_WAVE}, 5120
        s_add_u32 s{S_LW}, s{S_LW}, {WBASE}
        s_mul_i32 s{S_SP}, s{S_WAVE}, {SP_W}
        s_add_u32 s{S_SP}, s{S_SP}, {SPARE}
        s_cmp_eq_u32 s{S_WAVE}, 3
        s_cselect_b32 s{S_OOB}, 0x40000000, 0
        s_mov_b32 s{S_M1}, 0xffff0000
        s_mov_b32 s{S_M1+1}, 0
        s_mov_b32 s{S_M2}, 0
        s_mov_b32 s{S_M2+1}, 0xffff
        s_mov_b32 s{S_M3}, 0
        s_mov_b32 s{S_M3+1}, 0xffff0000
        """)
        if self.p2map == 1:
            A(f"""
            s_and_b32 s{S_A}, s2, 7
            s_lshl_b32 s{S_A}, s{S_A}, 2
            s_bfe_u32 s{S_Bq}, s2, 0x20003
            s_add_u32 s{S_RT2}, s{S_A}, s{S_Bq}
            s_lshr_b32 s{S_CT}, s2, 5
            """)
        else:
            A(f"""
            s_bfe_u32 s{S_A}, s2, 0x20001
            s_lshl_b32 s{S_A}, s{S_A}, 3
            s_bfe_u32 s{S_Bq}, s2, 0x30003
            s_add_u32 s{S_RT2}, s{S_A}, s{S_Bq}
            s_and_b32 s{S_A}, s2, 1
            s_lshl_b32 s{S_A}, s{S_A}, 2
            s_lshr_b32 s{S_Bq}, s2, 6
            s_add_u32 s{S_CT}, s{S_A}, s{S_Bq}
            """)
        A(f"""
        v_lshlrev_b32 v{V_L16}, 4, v0
        v_lshrrev_b32 v16, 3, v0            ; l>>3
        v_and_b32 v17, 7, v0                ; l&7
        v_lshrrev_b32 v18, 4, v0            ; q = l>>4
        v_xor_b32 v19, v17, v18
        v_lshlrev_b32 v19, 4, v19
        v_lshrrev_b32 v20, 5, v0
        v_lshlrev_b32 v20, 4, v20
        v_and_b32 v21, 3, v16
        v_add_u32 v20, v20, v21             ; 16*(l>>5) + ((l>>3)&3)
        v_mul_u32_u24 v20, 1280, v20
        v_add_u32 v{V_XD0}, v20, v19
        v_xor_b32 v{V_XD1}, 64, v{V_XD0}
        v_add_u32 v{V_XD1}, {32*1280 - 1024}, v{V_XD1}
        s_and_b32 s{S_A}, s{S_WAVE}, 1
        s_lshl_b32 s{S_Bq}, s{S_A}, 6
        s_mul_i32 s{S_A}, s{S_A}, {8*1280}
        v_mul_u32_u24 v22, 1280, v16        ; (l>>3)*1280
        v_xor_b32 v23, s{S_Bq}, v19
        v_add3_u32 v{V_BD}, v22, v23, s{S_A}
        v_lshl_add_u32 v47, v17, 4, v22
        v_and_b32 v22, 1, v18
        v_lshlrev_b32 v22, 1, v22
        v_xor_b32 v22, v22, v17
        v_lshlrev_b32 v22, 4, v22
        v_mul_u32_u24 v23, 3456, v16
        v_add_u32 v{V_WD0}, v22, v23
        v_xor_b32 v{V_WD1}, 64, v{V_WD0}
        v_add_u32 v{V_WD1}, {8*3456 - 1024}, v{V_WD1}
        v_lshl_add_u32 v46, v17, 4, v23
        v_and_b32 v22, 15, v0               ; row = l&15
        v_lshrrev_b32 v23, 1, v22
        v_xor_b32 v23, v23, v18
        v_lshlrev_b32 v23, 4, v23
        v_lshl_add_u32 v24, v22, 7, v23
        v_add_u32 v{V_XR0}, s{S_LX}, v24
        v_xor_b32 v{V_XR1}, 64, v{V_XR0}
        v_lshrrev_b32 v25, 3, v22
        v_mul_u32_u24 v25, {5120 - 1024}, v25
        v_add_u32 v24, v24, v25
        v_add_u32 v{V_BR0}, {WBASE}, v24
        v_xor_b32 v{V_BR1}, 64, v{V_BR0}
        v_lshrrev_b32 v23, 2, v22           ; r
        v_and_b32 v24, 3, v0
        v_lshlrev_b32 v24, 3, v24
        v_lshl_add_u32 v24, v23, 7, v24     ; r*128 + 8c
        v_lshrrev_b32 v25, 1, v18
        v_mul_u32_u24 v25, 5120, v25
        v_and_b32 v26, 1, v18
        v_lshl_add_u32 v25, v26, 10, v25
        v_add_u32 v25, v24, v25
        v_lshrrev_b32 v23, 1, v23
        v_lshl_or_b32 v23, v26, 1, v23
        v_lshl_add_u32 v25, v23, 5, v25
        v_add_u32 v{V_WR}, {WBASE}, v25
        v_xor_b32 v{V_WR+1}, 32, v{V_WR}
        v_xor_b32 v{V_WR+2}, 64, v{V_WR}
        v_xor_b32 v{V_WR+3}, 0x60, v{V_WR}
        """)
        A("s_waitcnt lgkmcnt(0)")
        if self.prof:
            A(f"v_mov_b32 v{self.vprof}, 0\n v_writelane_b32 v{self.vprof}, s{S_ST}, 0")
        A(f"s_mul_i32 s{S_A}, s{S_RT}, {64*1280}")
        self.srd(S_X, P_X, f"s{S_A}", 64 * 1280)
        A(f"""
        s_cmp_lt_u32 s{S_WAVE}, 2
        s_cselect_b32 s{S_B}, s{P_BRE}, s{P_BIM}
        s_cselect_b32 s{S_B+1}, s{P_BRE+1}, s{P_BIM+1}
        s_mul_i32 s{S_A}, s{S_SU0}, {16*1280}
        s_add_u32 s{S_B}, s{S_B}, s{S_A}
        s_addc_u32 s{S_B+1}, s{S_B+1}, 0
        s_sub_u32 s{S_B+2}, {640*1280}, s{S_A}
        s_mov_b32 s{S_B+3}, 0x20000
        s_min_u32 s{S_A}, s{S_GID}, 26
        s_lshl_b32 s{S_A}, s{S_A}, 7
        s_mul_i32 s{S_Bq}, s{S_WAVE}, {16*3456}
        s_add_u32 s{S_A}, s{S_A}, s{S_Bq}
        s_sub_u32 s{S_Bq}, {640*3456}, s{S_A}
        """)
        self.srd(S_G, P_G, f"s{S_A}", size_reg=f"s{S_Bq}")
        self.srd(S_U, P_U, f"s{S_A}", size_reg=f"s{S_Bq}")
        self.srd(S_WS, P_WS, None, WS_SIZE)
        A(f"""
        s_mul_i32 s{S_A}, s{S_RT2}, {96*4096}
        s_mul_i32 s{S_Bq}, s{S_WAVE}, {24*4096}
        s_add_u32 s{S_A}, s{S_A}, s{S_Bq}
        s_add_u32 s{S_A}, s{S_A}, {WS_H}
        """)
        self.srd(S_H, P_WS, f"s{S_A}", 24 * 4096)
        A(f"""
        s_mul_i32 s{S_A}, s{S_CT}, {96*5120}
        s_mul_i32 s{S_Bq}, s{S_WAVE}, {24*5120}
        s_add_u32 s{S_A}, s{S_A}, s{S_Bq}
        s_add_u32 s{S_A}, s{S_A}, {WS_W2P}
        """)
        self.srd(S_W2, P_WS, f"s{S_A}", 24 * 5120)

    def colsum_job(self):
        A = self.A
        order = [3, 4, 5, 6, 7, 8, 9, 0, 1, 2]
        Lb, Ld = self.lab("csb"), self.lab("csd")
        A(f"""
        s_mul_i32 s{S_A}, s{S_RB}, 5
        s_add_u32 s{S_A}, s{S_A}, s{S_GID}
        s_sub_u32 s{S_C}, s{S_A}, 27          ; yw
        s_cmp_ge_u32 s{S_C}, 27
        s_cbranch_scc1 {Lb}
        s_cmp_lt_u32 s{S_WAVE}, 2
        s_cselect_b32 s{S_T0}, s{P_G}, s{P_U}
        s_cselect_b32 s{S_T0+1}, s{P_G+1}, s{P_U+1}
        s_and_b32 s{S_A}, s{S_WAVE}, 1
        s_mul_i32 s{S_A}, s{S_A}, {32*3456}
        s_lshl_b32 s{S_Bq}, s{S_C}, 7
        s_add_u32 s{S_A}, s{S_A}, s{S_Bq}
        s_add_u32 s{S_T0}, s{S_T0}, s{S_A}
        s_addc_u32 s{S_T0+1}, s{S_T0+1}, 0
        s_sub_u32 s{S_T0+2}, {640*3456}, s{S_A}
        s_mov_b32 s{S_T0+3}, 0x20000
        """)
        snap = A.snapshot()
        for n, s in enumerate(order):
            for k in range(4):
                A(f"s_mov_b32 s{S_O0}, {(64*s + 8*k) * 3456}")
                A.vmem(f"buffer_load_dwordx4 {vr(96 + 16*n + 4*k, 4)}, v46, s[{S_T0}:{S_T0+3}], s{S_O0} offen", ('cs', n, k))
        A(f"s_mov_b32 s{S_A}, 0x00003f80\n s_mov_b32 s{S_Bq}, 0x3f800000")
        for e in range(8): A(f"v_mov_b32 v{16+e}, 0")
        for n in range(10):
            for k in range(4):
                A.wait_vm([('cs', n, k)])
                for e in range(4):
                    r = 96 + 16*n + 4*k + e
                    A(f"v_dot2_f32_bf16 v{16+2*e}, v{r}, s{S_A}, v{16+2*e}\n v_dot2_f32_bf16 v{17+2*e}, v{r}, s{S_Bq}, v{17+2*e}")
        A(f"v_lshlrev_b32 v24, 5, v0\n v_add_u32 v24, s{S_SP}, v24\n s_nop 1")
        A.ds(f"ds_write_b128 v24, v[16:19] offset:6144")
        A.ds(f"ds_write_b128 v24, v[20:23] offset:6160")
        A.drain_lg()
        A(f"s_barrier\n s_cmp_ge_u32 s{S_WAVE}, 2\n s_cbranch_scc1 {Ld}")
        A(f"s_mul_i32 s{S_A}, s{S_WAVE}, {2*SP_W}\n s_add_u32 s{S_A}, s{S_A}, {SPARE}\n v_lshl_add_u32 v24, v0, 2, s{S_A}")
        for h in range(2):
            for k in range(8):
                A.ds(f"ds_read_b32 v{96 + 8*h + k}, v24 offset:{6144 + h*SP_W + k*256}")
        A.drain_lg()
        for st in (8, 4, 2, 1):
            for k in range(st): A(f"v_add_f32 v{96+k}, v{96+k}, v{96+k+st}")
        A(f"""
        s_lshl_b32 s{S_A}, s{S_WAVE}, 13
        s_lshl_b32 s{S_Bq}, s{S_C}, 8
        s_add_u32 s{S_A}, s{S_A}, s{S_Bq}
        s_add_u32 s{S_A}, s{S_A}, {WS_CSG}
        v_lshlrev_b32 v24, 2, v0
        buffer_store_dword v96, v24, s[{S_WS}:{S_WS+3}], s{S_A} offen sc1
        s_branch {Ld}
        """)
        A.restore(snap)
        A(f"""
        {Lb}:
        s_cmp_ge_u32 s{S_C}, 37
        s_cbranch_scc1 {Ld}
        s_sub_u32 s{S_C}, s{S_C}, 27
        s_lshl_b32 s{S_C}, s{S_C}, 2
        s_add_u32 s{S_C}, s{S_C}, s{S_WAVE}   ; idx 0..39
        s_cmp_lt_u32 s{S_C}, 20
        s_cselect_b32 s{S_T0}, s{P_BRE}, s{P_BIM}
        s_cselect_b32 s{S_T0+1}, s{P_BRE+1}, s{P_BIM+1}
        s_cselect_b32 s{S_A}, 0, 20
        s_cselect_b32 s{S_D}, 0, 0x1000
        s_add_u32 s{S_D}, s{S_D}, {WS_CSB}
        s_sub_u32 s{S_C}, s{S_C}, s{S_A}
        s_mul_i32 s{S_A}, s{S_C}, {32*1280}
        s_add_u32 s{S_T0}, s{S_T0}, s{S_A}
        s_addc_u32 s{S_T0+1}, s{S_T0+1}, 0
        s_mov_b32 s{S_T0+2}, {32*1280}
        s_mov_b32 s{S_T0+3}, 0x20000
        """)
        for n, s in enumerate(order):
            for k in range(4):
                A(f"s_mov_b32 s{S_O0}, {k*8*1280 + s*128}")
                A.vmem(f"buffer_load_dwordx4 {vr(96 + 16*n + 4*k, 4)}, v47, s[{S_T0}:{S_T0+3}], s{S_O0} offen", ('cb', n, k))
        A(f"s_mov_b32 s{S_A}, 0x3f803f80")
        for e in range(4): A(f"v_mov_b32 v{16+e}, 0")
        for n in range(10):
            for k in range(4):
                A.wait_vm([('cb', n, k)])
                for e in range(4):
                    A(f"v_dot2_f32_bf16 v{16+k}, v{96 + 16*n + 4*k + e}, s{S_A}, v{16+k}")
        A("s_nop 2")
        for dpp in ("quad_perm:[1,0,3,2]", "quad_perm:[2,3,0,1]", "row_half_mirror"):
            for k in range(4): A(f"v_add_f32_dpp v{16+k}, v{16+k}, v{16+k} {dpp} row_mask:0xf bank_mask:0xf")
        A(f"""
        s_lshl_b32 s{S_C}, s{S_C}, 7
        s_add_u32 s{S_D}, s{S_D}, s{S_C}
        v_lshrrev_b32 v24, 3, v0
        v_lshlrev_b32 v24, 2, v24
        s_mov_b32 exec_lo, 0x01010101
        s_mov_b32 exec_hi, 0x01010101
        """)
        for k in range(4):
            A(f"buffer_store_dword v{16+k}, v24, s[{S_WS}:{S_WS+3}], s{S_D} offen offset:{32*k} sc1")
        A(f"s_mov_b64 exec, -1\n {Ld}:")
        A.restore(snap)

    def job_loads(self, nunits):
        A = self.A
        A(f"""
        s_cmp_lt_u32 s{S_JW}, 540
        s_cselect_b32 s{S_A}, 0, 540
        s_cselect_b32 s{S_T0}, s{P_WD}, s{P_CRE}
        s_cselect_b32 s{S_T0+1}, s{P_WD+1}, s{P_CRE+1}
        s_cselect_b32 s{S_T1}, s{P_WD}, s{P_CIM}
        s_cselect_b32 s{S_T1+1}, s{P_WD+1}, s{P_CIM+1}
        s_cselect_b32 s{S_O1}, {16*1280}, 0
        s_add_u32 s{S_O0}, s{S_O1}, {16*1280}
        s_sub_u32 s{S_A}, s{S_JW}, s{S_A}
        s_min_u32 s{S_A}, s{S_A}, 539
        s_mul_i32 s{S_C}, s{S_A}, 6554
        s_lshr_b32 s{S_C}, s{S_C}, 16
        s_mul_i32 s{S_Bq}, s{S_C}, 10
        s_sub_u32 s{S_D}, s{S_A}, s{S_Bq}      ; a
        s_mul_i32 s{S_A}, s{S_C}, s{S_O0}
        s_lshl_b32 s{S_Bq}, s{S_D}, 7
        s_add_u32 s{S_A}, s{S_A}, s{S_Bq}
        s_cmp_lt_u32 s{S_JW}, 940
        s_cselect_b32 s{S_A}, s{S_A}, 0
        s_cselect_b32 s{S_T0+2}, {15*1280 + 128}, 0
        s_cselect_b32 s{S_T1+2}, {15*1280 + 128}, 0
        s_add_u32 s{S_T0}, s{S_T0}, s{S_A}
        s_addc_u32 s{S_T0+1}, s{S_T0+1}, 0
        s_add_u32 s{S_A}, s{S_A}, s{S_O1}
        s_add_u32 s{S_T1}, s{S_T1}, s{S_A}
        s_addc_u32 s{S_T1+1}, s{S_T1+1}, 0
        s_mov_b32 s{S_T0+3}, 0x20000
        s_mov_b32 s{S_T1+3}, 0x20000
        s_mov_b32 s{S_O0}, {8*1280}
        s_mov_b32 m0, s{S_SP}
        s_nop 0
        """)
        A.vmem(f"buffer_load_dwordx4 v47, s[{S_T0}:{S_T0+3}], 0 offen lds", 'jw0')
        A(f"s_add_u32 m0, s{S_SP}, 1024\n s_nop 0")
        A.vmem(f"buffer_load_dwordx4 v47, s[{S_T0}:{S_T0+3}], s{S_O0} offen lds", 'jw1')
        A(f"s_add_u32 m0, s{S_SP}, 2048\n s_nop 0")
        A.vmem(f"buffer_load_dwordx4 v47, s[{S_T1}:{S_T1+3}], 0 offen lds", 'jw2')
        A(f"s_add_u32 m0, s{S_SP}, 3072\n s_nop 0")
        A.vmem(f"buffer_load_dwordx4 v47, s[{S_T1}:{S_T1+3}], s{S_O0} offen lds", 'jw3')
        A(f"s_mul_i32 s{S_A}, s{S_JW}, 2560")
        self.srd(S_T0, P_X, f"s{S_A}", 2560)
        A(f"""
        v_lshrrev_b32 v16, 5, v0
        v_mul_u32_u24 v16, 1280, v16
        v_and_b32 v17, 31, v0
        v_lshl_add_u32 v16, v17, 4, v16
        v_mov_b32 v18, 0x7fff0000
        v_cmp_gt_u32 vcc, 16, v17
        v_and_b32 v19, 15, v0
        s_lshl_b32 s{S_A}, s{S_SU0}, 5
        v_cndmask_b32 v18, v18, v16, vcc
        v_lshl_add_u32 v19, v19, 1, s{S_A}
        """)
        A.vmem(f"buffer_load_dwordx4 v[96:99], v16, s[{S_T0}:{S_T0+3}], 0 offen", 'st0')
        A.vmem(f"buffer_load_dwordx4 v[100:103], v16, s[{S_T0}:{S_T0+3}], 0 offen offset:512", 'st1')
        A.vmem(f"buffer_load_dwordx4 v[104:107], v18, s[{S_T0}:{S_T0+3}], 0 offen offset:1024", 'st2')
        for k, ptr in enumerate((P_LRE, P_LIM, P_LDT)):
            self.srd(S_T1, ptr, None, 1280)
            for u in range(nunits):
                A.vmem(f"buffer_load_ushort v{112 + 3*u + k}, v19, s[{S_T1}:{S_T1+3}], 0 offen offset:{32*u}", ('lam', u, k))

    def job_compute(self, nunits, cbase):
        A = self.A
        Ls, Lst, Ln = self.lab("jS"), self.lab("jst"), self.lab("jn")
        A.wait_vm([('lam', nunits - 1, 2)])
        A(f"s_cmp_ge_u32 s{S_JW}, 540\n s_cbranch_scc1 {Ls}")
        A(f"""
        v_lshrrev_b32 v32, 2, v0              ; 4q + r
        v_and_b32 v33, 3, v0
        v_lshlrev_b32 v33, 3, v33
        v_lshl_add_u32 v32, v32, 7, v33
        v_add_u32 v32, s{S_SP}, v32
        """)
        for t in range(4):
            A(f"ds_read_b64_tr_b16 {vr(16+4*t,2)}, v32 offset:{32*t}\n ds_read_b64_tr_b16 {vr(18+4*t,2)}, v32 offset:{2048 + 32*t}")
        A(f"""
        s_lshr_b32 s{S_A}, s{S_C}, 1           ; g
        s_and_b32 s{S_Bq}, s{S_C}, 1           ; jp
        s_mul_i32 s{S_Bq}, s{S_Bq}, 7
        s_lshr_b32 s{S_O0}, s{S_A}, 2
        s_add_u32 s{S_Bq}, s{S_Bq}, s{S_O0}
        s_and_b32 s{S_A}, s{S_A}, 3
        s_mul_i32 s{S_A}, s{S_A}, 24
        s_add_u32 s{S_A}, s{S_A}, s{S_Bq}      ; step'
        s_mul_i32 s{S_A}, s{S_A}, 5120
        s_add_u32 s{S_A}, s{S_A}, {WS_W2P}
        s_lshl_b32 s{S_D}, s{S_D}, 2           ; T0 = 4a
        s_waitcnt lgkmcnt(0)
        """)
        for t in range(4):
            A(f"""
            s_mul_i32 s{S_Bq}, s{S_D}, 52
            s_lshr_b32 s{S_Bq}, s{S_Bq}, 8     ; ct = T/5
            s_mul_i32 s{S_O0}, s{S_Bq}, {96*5120 - 5*1024}
            s_lshl_b32 s{S_O1}, s{S_D}, 10
            s_add_u32 s{S_O0}, s{S_O0}, s{S_O1}
            s_add_u32 s{S_O0}, s{S_O0}, s{S_A}
            buffer_store_dwordx4 {vr(16+4*t,4)}, v{V_L16}, s[{S_WS}:{S_WS+3}], s{S_O0} offen sc1
            s_add_u32 s{S_D}, s{S_D}, 1
            """)
        A(f"s_branch {Ln}\n {Ls}:")
        A(f"""
        v_and_b32 v32, 15, v0
        v_lshrrev_b32 v33, 4, v0
        v_lshlrev_b32 v33, 3, v33
        v_lshl_add_u32 v32, v32, 7, v33
        v_add_u32 v32, s{S_SP}, v32
        """)
        for u in range(4):
            A(f"ds_read_b64 {vr(128+4*u,2)}, v32 offset:{32*u}\n ds_read_b64 {vr(130+4*u,2)}, v32 offset:{2048 + 32*u}")
        A(f"""
        s_mul_i32 s{S_Bq}, s{S_C}, 52
        s_lshr_b32 s{S_Bq}, s{S_Bq}, 8         ; ct
        s_mul_i32 s{S_O0}, s{S_Bq}, {96*5120 - 5*1024}
        s_lshl_b32 s{S_O1}, s{S_C}, 10
        s_add_u32 s{S_O0}, s{S_O0}, s{S_O1}
        s_add_u32 s{S_D}, s{S_D}, 14
        s_mul_i32 s{S_D}, s{S_D}, 5120
        s_add_u32 s{S_O0}, s{S_O0}, s{S_D}
        s_add_u32 s{S_O0}, s{S_O0}, {WS_W2P}
        s_cmp_lt_u32 s{S_JW}, 940
        s_cselect_b32 s{S_O0}, s{S_O0}, 0x40000000
        s_mov_b32 s{S_A}, 0x05040100
        s_mov_b32 s{S_Bq}, 0x07060302
        s_waitcnt lgkmcnt(0)
        """)
        for u in range(4):
            for k in range(4):
                A(f"v_perm_b32 v{16+4*u+k}, v{130+4*u+(k>>1)}, v{128+4*u+(k>>1)}, s{S_A if k % 2 == 0 else S_Bq}")
            A(f"buffer_store_dwordx4 {vr(16+4*u,4)}, v{V_L16}, s[{S_WS}:{S_WS+3}], s{S_O0} offen sc1\n s_add_u32 s{S_O0}, s{S_O0}, {24*5120}")
        A(f"{Ln}:")
        A.vm += [None] * 4
        A(f"s_mov_b32 s{S_A}, 0x3f803f80\n v_mov_b32 v32, 0")
        for r in range(12): A(f"v_dot2_f32_bf16 v32, v{96+r}, s{S_A}, v32")
        def red32(v, t):
            A("s_nop 2")
            for dpp in ("quad_perm:[1,0,3,2]", "quad_perm:[2,3,0,1]", "row_half_mirror", "row_mirror"):
                A(f"v_add_f32_dpp v{v}, v{v}, v{v} {dpp} row_mask:0xf bank_mask:0xf\n s_nop 1")
            A(f"v_mov_b32 v{t}, v{v}\n s_nop 1\n v_permlane16_swap_b32 v{v}, v{t}\n s_nop 0\n v_add_f32 v{v}, v{v}, v{t}")
        red32(32, 33)
        A(f"v_mul_f32 v32, {-1.0/640.0!r}, v32          ; -mean")
        A(f"s_mov_b32 s{S_A}, 0xffff0000\n v_mov_b32 v34, 0\n v_mov_b32 v35, 0\n v_mov_b32 v36, 0\n v_mov_b32 v37, 0")
        for r in range(12):
            acc = 34 if r < 8 else 36
            t = 38 + 2 * (r & 1)
            A(f"""
            v_lshlrev_b32 v{t}, 16, v{96+r}
            v_and_b32 v{t+1}, s{S_A}, v{96+r}
            v_pk_add_f32 {vr(t,2)}, {vr(t,2)}, v[32:33] op_sel_hi:[1,0]
            v_pk_fma_f32 {vr(acc,2)}, {vr(t,2)}, {vr(t,2)}, {vr(acc,2)}
            """)
        A(f"""
        v_and_b32 v38, 31, v0
        v_cmp_gt_u32 vcc, 16, v38
        v_add_f32 v36, v36, v37
        v_add_f32 v34, v34, v35
        v_cndmask_b32 v36, 0, v36, vcc
        v_add_f32 v34, v34, v36
        """)
        red32(34, 35)
        A(f"""
        v_mul_f32 v34, {1.0/640.0!r}, v34
        v_cvt_pk_bf16_f32 v34, v34, v32
        v_and_b32 v32, s{S_A}, v34
        v_lshlrev_b32 v34, 16, v34
        v_add_f32 v34, 0x3727c5ac, v34         ; + 1e-5
        v_cvt_pk_bf16_f32 v34, v34, v34
        v_lshlrev_b32 v34, 16, v34
        v_sqrt_f32 v34, v34
        s_nop 0
        v_cvt_pk_bf16_f32 v34, v34, v34
        v_lshlrev_b32 v34, 16, v34
        v_rcp_f32 v33, v34
        v_lshrrev_b32 v35, 5, v0
        v_lshlrev_b32 v35, 3, v35
        s_lshl_b32 s{S_A}, s{S_JW}, 4
        s_mov_b32 exec_lo, 1
        s_mov_b32 exec_hi, 1
        """)
        A.vmem(f"buffer_store_dwordx2 v[32:33], v35, s[{S_WS}:{S_WS+3}], s{S_A} offen sc1")
        A(f"""
        s_mov_b64 exec, 1
        v_mov_b32 v36, 0
        s_lshl_b32 s{S_A}, s{S_RT}, 5
        s_add_u32 s{S_A}, s{S_A}, s{S_GID}
        s_lshl_b32 s{S_A}, s{S_A}, 2
        s_add_u32 s{S_A}, s{S_A}, {WS_FLAGS}
        """)
        A.vmem(f"buffer_store_dword v36, v36, s[{S_WS}:{S_WS+3}], s{S_A} offen sc1")
        A(f"""
        s_mov_b64 exec, 0xffff
        v_mov_b32 v36, {SENT:#x}
        v_mov_b32 v37, {SENT:#x}
        v_lshlrev_b32 v38, 3, v0
        s_lshl_b32 s{S_A}, s{S_SU0}, 5
        s_add_u32 s{S_A}, s{S_A}, s{S_RT}
        s_lshl_b32 s{S_A}, s{S_A}, 7
        s_add_u32 s{S_A}, s{S_A}, {WS_FIN}
        """)
        for u in range(nunits):
            A.vmem(f"buffer_store_dwordx2 v[36:37], v38, s[{S_WS}:{S_WS+3}], s{S_A} offen sc1", ('init', u))
            if u + 1 < nunits: A(f"s_add_u32 s{S_A}, s{S_A}, 4096")
        A("s_mov_b64 exec, -1")

    def s_consts(self, nunits, cbase):
        A = self.A
        for u in range(nunits):
            c = cbase[u]
            LAM, CA, L16, L64, L16Q, L512Q = c, c + 2, c + 4, c + 6, c + 8, c + 10
            s = 112 + 3 * u
            A(f"""
            v_lshlrev_b32 v16, 16, v{s}            ; Lambda_re
            v_lshlrev_b32 v17, 16, v{s+1}          ; Lambda_im
            v_lshlrev_b32 v18, 16, v{s+2}
            v_mul_f32 v18, 0x3fb8aa3b, v18
            v_exp_f32 v18, v18
            s_nop 0
            v_cvt_pk_bf16_f32 v18, v18, v18
            v_lshlrev_b32 v18, 16, v18
            v_mul_f32 v19, v18, v16
            v_mul_f32 v20, v18, v17
            v_mul_f32 v19, 0x3fb8aa3b, v19
            v_mul_f32 v20, 0.15915494, v20
            v_exp_f32 v19, v19
            v_rndne_f32 v21, v20
            v_sub_f32 v20, v20, v21
            v_cos_f32 v21, v20
            v_sin_f32 v22, v20
            v_mul_f32 v23, v16, v16
            v_fmac_f32 v23, v17, v17
            v_mul_f32 v{LAM}, v19, v21
            v_mul_f32 v{LAM+1}, v19, v22
            v_rcp_f32 v23, v23
            v_add_f32 v24, -1.0, v{LAM}
            v_mov_b32 v25, v{LAM+1}
            v_add_f32 v23, v23, v23
            v_mul_f32 v26, v16, v23
            v_mul_f32 v27, -v17, v23               ; 2*conj(Lam)/|Lam|^2
            """)
            self.cmul(CA, 24, 26)
            self.cmul(16, LAM, LAM)
            self.cmul(18, 16, 16)
            self.cmul(16, 18, 18)
            self.cmul(L16, 16, 16)
            self.cmul(18, L16, L16)
            self.cmul(20, L16, 18)
            self.cmul(L64, 18, 18)
            self.cmul(16, L64, L64)
            self.cmul(22, 16, 16)
            self.cmul(16, 22, 22)
            self.cmul(22, 16, 16)
            self.cmul(24, 16, 22)
            for k in range(2):
                one = "1.0" if k == 0 else "0"
                A(f"""
                v_cndmask_b32 v{L16Q+k}, {one}, v{L16+k}, s[{S_M1}:{S_M1+1}]
                v_cndmask_b32 v{L16Q+k}, v{L16Q+k}, v{18+k}, s[{S_M2}:{S_M2+1}]
                v_cndmask_b32 v{L16Q+k}, v{L16Q+k}, v{20+k}, s[{S_M3}:{S_M3+1}]
                v_cndmask_b32 v{L512Q+k}, v{24+k}, v{22+k}, s[{S_M1}:{S_M1+1}]
                v_cndmask_b32 v{L512Q+k}, v{L512Q+k}, v{16+k}, s[{S_M2}:{S_M2+1}]
                v_cndmask_b32 v{L512Q+k}, v{L512Q+k}, {one}, s[{S_M3}:{S_M3+1}]
                """)

    def dma_ops(self, s, isx):
        slot = s % 3
        wl = slot * WSLOT
        w, x = [], []
        if isx:
            w.append(([f"s_mov_b32 s{S_O0}, {s*64*3456}", f"s_add_u32 m0, s{S_LW}, {wl + 1024}"], f"buffer_load_dwordx4 v{V_WD0}, s[{S_G}:{S_G+3}], s{S_O0} offen lds"))
            w.append(([], f"buffer_load_dwordx4 v{V_WD1}, s[{S_G}:{S_G+3}], s{S_O0} offen offset:1024 lds"))
            w.append(([f"s_add_u32 m0, s{S_LW}, {wl + 3072}"], f"buffer_load_dwordx4 v{V_WD0}, s[{S_U}:{S_U+3}], s{S_O0} offen lds"))
            w.append(([], f"buffer_load_dwordx4 v{V_WD1}, s[{S_U}:{S_U+3}], s{S_O0} offen offset:1024 lds"))
        for u in range(1 if isx else 3):
            so = S_O1 if u % 2 == 0 else S_O0
            w.append(([f"s_mov_b32 s{so}, {s*128 + u*16*1280}", f"s_add_u32 m0, s{S_LW}, {wl + 1024*u}"], f"buffer_load_dwordx4 v{V_BD}, s[{S_B}:{S_B+3}], s{so} offen lds"))
        for i in range(4):
            so = S_O0 if i % 2 == 0 else S_O1
            x.append(([f"s_mov_b32 s{so}, {s*128 + 4*i*1280}", f"s_add_u32 m0, s{S_LX}, {(s % 2)*XSLOT + i*2048}"], f"buffer_load_dwordx4 v{V_XD0}, s[{S_X}:{S_X+3}], s{so} offen lds"))
            x.append(([], f"buffer_load_dwordx4 v{V_XD1}, s[{S_X}:{S_X+3}], s{so} offen offset:1024 lds"))
        return w, x

    def dma_stage_now(self, s, isx):
        A = self.A
        w, x = self.dma_ops(s, isx)
        for k, (sc, d) in enumerate(w + x):
            for t in reversed(sc): A(t)
            if len(sc) == 1: A("s_nop 0")
            A.vmem(d, ('dma', s, k))
        return ('dma', s, len(w) + len(x) - 1)

    def wreads(self, n, isx):
        NJ = 10 if isx else 6
        step, j = divmod(n, NJ); s, kh = divmod(step, 2); slot = s % 3
        d = WB + (n % 4) * 4
        if not isx or j < 2:
            a = V_BR0 if kh == 0 else V_BR1
            u, c = divmod(j, 2)
            return [(f"ds_read_b128 {vr(d,4)}, v{a} offset:{slot*WSLOT + c*10240 + u*1024}", ('w', n, 0))]
        t, isu = divmod(j - 2, 2)
        off = slot * WSLOT + kh * 10240 + 1024 + isu * 2048
        return [(f"ds_read_b64_tr_b16 {vr(d,2)}, v{V_WR + t} offset:{off}", ('w', n, 0)),
                (f"ds_read_b64_tr_b16 {vr(d+2,2)}, v{V_WR + t} offset:{off + 512}", ('w', n, 1))]

    def xreads(self, step):
        s, kh = divmod(step, 2)
        a = V_XR0 if kh == 0 else V_XR1
        return [(f"ds_read_b128 {vr(XB + (step % 2)*16 + i*4, 4)}, v{a} offset:{(s % 2)*XSLOT + i*2048}", ('x', step, i)) for i in range(4)]

    def w2_load(self, n, j):
        d = (n % 12) * 20 + j * 4
        sc = []
        if j == 0:
            sc = [f"s_add_u32 s{S_KX}, s{S_OOB}, {n*5120}"] if n in (6, 13) else [f"s_mov_b32 s{S_KX}, {n*5120}"]
        if j == 4:
            sc = [f"s_add_u32 s{S_KX}, s{S_KX}, 1024"]
        off = j * 1024 if j < 4 else 3072
        return sc, f"buffer_load_dwordx4 {ar(d,4)}, v{V_L16}, s[{S_W2}:{S_W2+3}], s{S_KX} offen offset:{off} sc1", ('w2', n, j)

    def poll_init_issue(self, A):
        self.srd(S_T0, P_DBG, None, 256)
        A(f"v_and_b32 v{V_P}, 3, v0\n v_lshlrev_b32 v{V_P}, 6, v{V_P}")
        A.vmem(f"buffer_load_dword v95, v{V_P}, s[{S_T0}:{S_T0+3}], 0 offen sc1", 'pollinit')

    def poll_init_check(self, A):
        Lok, Lp = self.lab("iok"), self.lab("ip")
        A.wait_vm(['pollinit'])
        A(f"""
        v_cmp_gt_u32 vcc, 64, v95
        s_mov_b32 s{S_SPIN}, 0
        s_cbranch_vccz {Lok}
        {Lp}:
        buffer_load_dword v95, v{V_P}, s[{S_T0}:{S_T0+3}], 0 offen sc1
        s_add_u32 s{S_SPIN}, s{S_SPIN}, 1
        s_cmp_gt_u32 s{S_SPIN}, {SPIN_MAX}
        s_cbranch_scc1 {Lok}
        s_waitcnt vmcnt(0)
        v_cmp_gt_u32 vcc, 64, v95
        s_nop 0
        s_cbranch_vccnz {Lp}
        {Lok}:
        """)

    def arrive(self, A):
        self.srd(S_T0, P_DBG, None, 256)
        A(f"""
        s_and_b32 s{S_A}, s2, 3
        s_lshl_b32 s{S_A}, s{S_A}, 6
        s_cmp_eq_u32 s{S_WAVE}, 0
        s_cselect_b32 s{S_A}, s{S_A}, 0x40000000
        v_mov_b32 v94, 1
        v_mov_b32 v95, 0
        s_mov_b64 exec, 1
        """)
        A.vmem(f"buffer_atomic_add v94, v95, s[{S_T0}:{S_T0+3}], s{S_A} offen")
        A("s_mov_b64 exec, -1")

    def stage_dma(self, A, nunits):
        A(f"""
        s_lshl_b32 s{S_A}, s{S_RT}, 9
        s_min_u32 s{S_Bq}, s{S_GID}, 26
        s_lshl_b32 s{S_Bq}, s{S_Bq}, 8
        s_add_u32 s{S_C}, s{S_Bq}, {WS_CSG - 512}
        s_add_u32 s{S_D}, s{S_Bq}, {WS_CSU - 768}
        v_mov_b32 v92, s{S_A}
        v_mov_b32 v93, s{S_C}
        v_mov_b32 v94, s{S_D}
        v_cndmask_b32 v92, v92, v93, s[{S_M2}:{S_M2+1}]
        v_cndmask_b32 v92, v92, v94, s[{S_M3}:{S_M3+1}]
        v_add_u32 v92, v92, v{V_L16}
        s_add_u32 m0, s{S_SP}, 4096
        v_lshrrev_b32 v93, 3, v0              ; u
        v_bfe_u32 v94, v0, 2, 1               ; comp
        v_lshlrev_b32 v93, 6, v93
        v_lshl_add_u32 v93, v94, 12, v93
        v_and_b32 v94, 3, v0
        v_lshl_add_u32 v93, v94, 4, v93
        s_lshl_b32 s{S_A}, s{S_SU0}, 6
        s_add_u32 s{S_A}, s{S_A}, {WS_CSB - 1024}
        """)
        A.vmem(f"buffer_load_dwordx4 v92, s[{S_WS}:{S_WS+3}], 0 offen sc1 lds", 'stg0')
        A.vmem(f"buffer_load_dwordx4 v93, s[{S_WS}:{S_WS+3}], s{S_A} offen offset:1024 sc1 lds", 'stg1')

    def main1(self, isx):
        A = self.A
        NJ = 10 if isx else 6
        NF = 20 * NJ
        S = Sched()
        for t, rid in self.xreads(0): S.ds(-1, t, rid)
        for n in range(3):
            for t, rid in self.wreads(n, isx): S.ds(-1, t, rid)
        w2q = [(n, j) for n in range(12) for j in range(5)]
        nd = 13 if isx else 11
        for step in range(20):
            s, kh = divmod(step, 2)
            for j in range(NJ):
                n = step * NJ + j
                w = vr(WB + (n % 4) * 4, 4)
                for i in range(4):
                    x = vr(XB + (step % 2) * 16 + i * 4, 4)
                    acc = vr(accreg(j, i), 4)
                    c = acc if step else "0"
                    isS = (not isx) or j < 2
                    a, b = (x, w) if isS else (w, x)
                    deps = [('x', step, i), ('w', n, 0)] + ([] if isS else [('w', n, 1)])
                    S.mfma(f"v_mfma_f32_16x16x32_bf16 {acc}, {a}, {b}, {c}", deps)
                g0 = n * 4
                if kh == 1 and j == NJ - 3 and s < 9:
                    def bar(A, s=s):
                        A.wait_vm([('dma', s + 1, nd - 1)], force=True)
                        A("s_barrier")
                        if s == 0: self.arrive(A)
                        if s == 6: self.poll_init_issue(A)
                        if s == 7:
                            self.poll_init_check(A)
                            self.stage_dma(A, 1 if isx else 3)
                    S.call(g0 - 1, bar)
                if n + 3 < NF:
                    for k, (t, rid) in enumerate(self.wreads(n + 3, isx)): S.ds(g0 + k, t, rid)
                if j in (NJ - 3, NJ - 2) and step < 19:
                    h = j - (NJ - 3)
                    for k, (t, rid) in enumerate(self.xreads(step + 1)[h*2:h*2 + 2]): S.ds(g0 + 2 + k, t, rid)
            if kh == 0 and s <= 7:
                w, x = self.dma_ops(s + 2, isx)
                base = step * NJ * 4
                if isx:
                    pos = [4*g + 2 for g in (0, 1, 2, 3, 4)] + [4*g + 2 for g in (9, 10, 11, 12, 13, 14, 15, 16)]
                else:
                    pos = [2, 6, 10] + [22, 23, 26, 27, 30, 31, 33, 34]
                for k, ((sc, d), p) in enumerate(zip(w + x, pos)):
                    for kk, t in enumerate(sc): S.scalar(base + p - len(sc) + kk, t)
                    S.vmem(base + p, d, ('dma', s + 2, k))
            if s >= 8:
                for j in range(NJ):
                    if j in (NJ - 3, NJ - 2) and step < 19: continue
                    n_, j_ = w2q.pop(0)
                    sc, t, rid = self.w2_load(n_, j_)
                    g = (step * NJ + j) * 4 + 2
                    for tt in sc: S.scalar(g - 1, tt)
                    S.vmem(g, t, rid)
        S.emit(A)
        A("s_barrier")
        self.w2q = w2q

    def w2_more(self, k):
        A = self.A
        for _ in range(min(k, len(self.w2q))):
            n_, j_ = self.w2q.pop(0)
            sc, t, rid = self.w2_load(n_, j_)
            for tt in sc: A(tt)
            A.vmem(t, rid)

    def s_stats_read(self, regs):
        A = self.A
        A.wait_vm(['stg1'])
        A(f"v_lshrrev_b32 v1, 4, v0\n v_lshlrev_b32 v1, 7, v1\n v_add_u32 v1, s{S_SP}, v1")
        A(f"v_and_b32 v2, 15, v0\n v_lshl_add_u32 v2, v2, 2, s{S_SP}")
        for i in range(4):
            A.ds(f"ds_read_b128 {vr(regs[i],4)}, v1 offset:{4096 + 32*i}", ('ss', i, 0))
            A.ds(f"ds_read_b128 {vr(regs[i]+4,4)}, v1 offset:{4096 + 32*i + 16}", ('ss', i, 1))

    def s_part_a(self, u, ub, c, st, T, CQ):
        A = self.A
        LAM, CA, L16 = c, c + 2, c + 4
        A.ds(f"ds_read_b32 v{T}, v2 offset:{5120 + 128*u}", ('csb', u, 0))
        A.ds(f"ds_read_b32 v{T+1}, v2 offset:{5120 + 128*u + 64}", ('csb', u, 1))
        A.wait_lg([('csb', u, 1)])
        CCS = T + 2
        self.cmul(CCS, CA, T)
        for i in range(4):
            re, im = accreg(2*u, i), accreg(2*u + 1, i)
            for k in range(4):
                for r in range(4):
                    U = vr(ub + 2*(4*i + r), 2); sp = vr(st[i] + 2*r, 2); b = r & 1
                    if k == 0: A(f"v_pk_mul_f32 {U}, {vr(CCS,2)}, {sp} op_sel_hi:[1,0]")
                    elif k == 1: A(f"v_pk_fma_f32 {U}, {vr(CA,2)}, {vr(re + (r & 2),2)}, {U} op_sel:[0,{b},0] op_sel_hi:[1,{b},1]")
                    elif k == 2: A(f"v_pk_fma_f32 {U}, {vr(CA,2)}, {vr(im + (r & 2),2)}, {U} op_sel:[1,{b},0] op_sel_hi:[0,{b},1] neg_lo:[1,0,0]")
                    else: A(f"v_pk_mul_f32 {U}, {U}, {sp} op_sel:[0,1] op_sel_hi:[1,1]")
        cur = ub
        for tau in range(1, 16):
            nxt = T + 2 * (tau & 1)
            self.cfma(nxt, LAM, cur, ub + 2*tau)
            cur = nxt
        F, B, C, D = cur, T + 4, T + 6, T + 8
        A(f"v_mov_b32 v{B}, v{F}\n v_mov_b32 v{B+1}, v{F+1}\n s_nop 0")
        A(f"v_permlane16_swap_b32 v{F}, v{B}\n v_permlane16_swap_b32 v{F+1}, v{B+1}")
        A(f"v_mov_b32 v{C}, v{F}\n v_mov_b32 v{D}, v{B}\n v_mov_b32 v{C+1}, v{F+1}\n v_mov_b32 v{D+1}, v{B+1}\n s_nop 0")
        A(f"v_permlane32_swap_b32 v{F}, v{C}\n v_permlane32_swap_b32 v{B}, v{D}\n v_permlane32_swap_b32 v{F+1}, v{C+1}\n v_permlane32_swap_b32 v{B+1}, v{D+1}")
        self.cfma(B, L16, F, B)
        self.cfma(C, L16, B, C)
        self.cfma(D, L16, C, D)
        A(f"""
        s_add_u32 s{S_A}, s{S_SU0}, {u}
        s_lshl_b32 s{S_A}, s{S_A}, 5
        s_add_u32 s{S_A}, s{S_A}, s{S_RT}
        s_lshl_b32 s{S_A}, s{S_A}, 7
        s_add_u32 s{S_A}, s{S_A}, {WS_FIN}
        v_lshlrev_b32 v{T}, 3, v0
        s_mov_b64 exec, 0xffff
        """)
        A.vmem(f"buffer_store_dwordx2 {vr(D,2)}, v{T}, s[{S_WS}:{S_WS+3}], s{S_A} offen sc1")
        A("s_mov_b64 exec, -1")
        for k in range(2):
            A(f"""
            v_cndmask_b32 v{CQ+k}, 0, v{F+k}, s[{S_M1}:{S_M1+1}]
            v_cndmask_b32 v{CQ+k}, v{CQ+k}, v{B+k}, s[{S_M2}:{S_M2+1}]
            v_cndmask_b32 v{CQ+k}, v{CQ+k}, v{C+k}, s[{S_M3}:{S_M3+1}]
            """)

    def fin_addr(self, VA):
        A = self.A
        A(f"""
        v_lshrrev_b32 v{VA}, 4, v0
        v_lshlrev_b32 v{VA}, 10, v{VA}
        v_and_b32 v{VA+1}, 15, v0
        v_lshl_add_u32 v{VA}, v{VA+1}, 3, v{VA}
        s_lshl_b32 s{S_A}, s{S_RT}, 7
        s_sub_u32 s{S_A}, s{S_A}, 4096
        v_add_u32 v{VA}, s{S_A}, v{VA}
        """)
        for e in range(1, 8): A(f"v_add_u32 v{VA+e}, {128*e}, v{VA}")

    def fin_issue(self, u, VA, R):
        A = self.A
        A(f"s_add_u32 s{S_A}, s{S_SU0}, {u}\n s_lshl_b32 s{S_A}, s{S_A}, 12\n s_add_u32 s{S_A}, s{S_A}, {WS_FIN}")
        self.srd(S_T0, P_WS, f"s{S_A}", 4096)
        for e in range(8):
            A.vmem(f"buffer_load_dwordx2 {vr(R + 2*e, 2)}, v{VA+e}, s[{S_T0}:{S_T0+3}], 0 offen sc1", ('fin', u, e))

    def s_part_b(self, u, ub, c, CQ, VA, R, T, hoff_reg):
        A = self.A
        LAM, L64, L16Q, L512Q = c, c + 6, c + 8, c + 10
        Lh, Lok = self.lab("fh"), self.lab("fok")
        A.wait_vm([('fin', u, 7)])
        A(f"s_mov_b32 s{S_SPIN}, 0\n {Lh}:")
        cur = R
        for e in range(1, 8):
            nxt = T + 2 * (e & 1)
            self.cfma(nxt, L64, cur, R + 2*e)
            cur = nxt
        A(f"v_cmp_u_f32 vcc, v{cur}, v{cur+1}\n s_mov_b32 s{S_A}, {SENT:#x}\n s_cbranch_vccz {Lok}")
        A(f"s_mov_b64 s[{S_C}:{S_C+1}], 0")
        for k in range(16):
            A(f"v_cmp_eq_u32 vcc, s{S_A}, v{R+k}\n s_or_b64 s[{S_C}:{S_C+1}], s[{S_C}:{S_C+1}], vcc")
        A(f"s_cbranch_scc0 {Lok}\n s_add_u32 s{S_SPIN}, s{S_SPIN}, 1\n s_cmp_gt_u32 s{S_SPIN}, {SPIN_MAX}\n s_cbranch_scc1 {Lok}")
        for e in range(8):
            A(f"buffer_load_dwordx2 {vr(R + 2*e, 2)}, v{VA+e}, s[{S_T0}:{S_T0+3}], 0 offen sc1")
        A(f"s_waitcnt vmcnt(0)\n s_branch {Lh}\n {Lok}:")
        G, G2 = T, T + 4
        self.cmul(G, L512Q, cur)
        A(f"v_mov_b32 v{G2}, v{G}\n v_mov_b32 v{G2+1}, v{G+1}\n s_nop 0")
        A(f"v_permlane16_swap_b32 v{G}, v{G2}\n v_permlane16_swap_b32 v{G+1}, v{G2+1}\n s_nop 0")
        A(f"v_pk_add_f32 {vr(G,2)}, {vr(G,2)}, {vr(G2,2)}")
        A(f"v_mov_b32 v{G2}, v{G}\n v_mov_b32 v{G2+1}, v{G+1}\n s_nop 0")
        A(f"v_permlane32_swap_b32 v{G}, v{G2}\n v_permlane32_swap_b32 v{G+1}, v{G2+1}\n s_nop 0")
        A(f"v_pk_add_f32 {vr(G,2)}, {vr(G,2)}, {vr(G2,2)}")
        self.cfma(CQ, L16Q, G, CQ)
        prev = CQ
        for tau in range(16):
            U = ub + 2 * tau
            self.cfma(U, LAM, prev, U)
            if tau > 0:
                i, r = divmod(tau - 1, 4)
                A(f"v_cvt_pk_bf16_f32 v{R + tau - 1}, v{prev}, -v{prev+1}")
                A.ds(f"ds_write_b32 v3, v{R + tau - 1} offset:{i*1024 + r*64}", ('tw', u, tau - 1))
            prev = U
        A(f"v_cvt_pk_bf16_f32 v{R + 15}, v{prev}, -v{prev+1}")
        A.ds(f"ds_write_b32 v3, v{R + 15} offset:{3*1024 + 3*64}", ('tw', u, 15))
        for i in range(4):
            A.ds(f"ds_read_b128 {vr(ub + 4*i, 4)}, v4 offset:{i*1024}", ('tr', u, i))
        for i in range(4):
            A.wait_lg([('tr', u, i)])
            A.vmem(f"buffer_store_dwordx4 {vr(ub + 4*i, 4)}, v{V_L16}, s[{S_WS}:{S_WS+3}], s{hoff_reg} offen offset:{i*1024} sc1", ('hs', u, i))

    def s_tr_addr(self):
        self.A(f"""
        v_lshrrev_b32 v3, 4, v0
        v_and_b32 v5, 15, v0
        v_lshlrev_b32 v4, 4, v3
        v_lshl_add_u32 v4, v5, 6, v4
        v_add_u32 v4, s{S_SP}, v4
        v_lshlrev_b32 v3, 8, v3
        v_lshl_add_u32 v3, v5, 2, v3
        v_add_u32 v3, s{S_SP}, v3              ; write: q*256 + p*4
        """)

    def s_hoff(self, u, reg):
        self.A(f"""
        s_add_u32 s{S_A}, s{S_SU0}, {u}
        s_and_b32 s{S_Bq}, s{S_A}, 3
        s_mul_i32 s{S_Bq}, s{S_Bq}, 24
        s_lshr_b32 s{S_A}, s{S_A}, 2
        s_add_u32 s{S_A}, s{S_A}, s{S_Bq}
        s_mul_i32 s{S_Bq}, s{S_RT}, 96
        s_add_u32 s{S_A}, s{S_A}, s{S_Bq}
        s_lshl_b32 s{S_A}, s{S_A}, 12
        s_add_u32 s{reg}, s{S_A}, {WS_H + 14*4096}
        """)

    def f_setup(self, PS, QS):
        A = self.A
        A(f"""
        v_bfe_u32 v5, v0, 2, 2
        v_and_b32 v6, 3, v0
        v_lshl_add_u32 v5, v5, 4, v6
        v_lshl_add_u32 v5, v5, 3, s{S_SP}
        v_lshrrev_b32 v6, 4, v0
        v_lshl_add_u32 v6, v6, 4, s{S_SP}
        """)
        for i in range(4): A.ds(f"ds_read_b64 {vr(PS + 2*i, 2)}, v5 offset:{4096 + 32*i}", ('fs', i))
        A(f"""
        s_and_b32 s{S_A}, s{S_GID}, 3
        s_mul_i32 s{S_A}, s{S_A}, 24
        s_lshr_b32 s{S_Bq}, s{S_GID}, 2
        s_add_u32 s{S_A}, s{S_A}, s{S_Bq}
        s_mul_i32 s{S_Bq}, s{S_RT}, 96
        s_add_u32 s{S_A}, s{S_A}, s{S_Bq}
        s_lshl_b32 s{S_A}, s{S_A}, 12
        s_add_u32 s{S_O0}, s{S_A}, {WS_H}
        s_add_u32 s{S_O1}, s{S_O0}, {7*4096}
        """)
        A.wait_lg([('fs', 3)])
        for i in range(4): A(f"v_mul_f32 v{QS+i}, v{PS+2*i+1}, v{PS+2*i+1}")
        for i in range(4): A(f"v_rcp_f32 v{QS+i}, v{QS+i}")
        for i in range(4): A(f"v_mul_f32 v{PS+2*i+1}, 0xbfb8aa3b, v{PS+2*i+1}")

    def f_cs_read(self, jp, CS):
        A = self.A
        for h in range(2):
            t = 2 * jp + h
            A.ds(f"ds_read_b128 {vr(CS + 8*h, 4)}, v6 offset:{4096 + 512 + 64*t}", ('fc', jp, h, 0))
            A.ds(f"ds_read_b128 {vr(CS + 8*h + 4, 4)}, v6 offset:{4096 + 768 + 64*t}", ('fc', jp, h, 1))

    def f_part(self, jp, PS, QS, CS, E, extra=None):
        A = self.A
        A.wait_lg([('fc', jp, 1, 1)])
        for i in range(4):
            items = []
            for h in range(2):
                t = 2 * jp + h
                for rp in range(2):
                    items.append((accreg(2 + 2*t, i) + 2*rp, accreg(3 + 2*t, i) + 2*rp, CS + 8*h + 2*rp, CS + 8*h + 4 + 2*rp, E + 2*(2*h + rp)))
            Pp = vr(PS + 2*i, 2); Q = vr(QS + (i & 2), 2); b = i & 1
            O = accreg(2 + 4*jp, i)
            for G, U, cg, cu, e in items: A(f"v_pk_fma_f32 {vr(G,2)}, {vr(cg,2)}, {Pp}, {vr(G,2)} op_sel_hi:[1,0,1]")
            for G, U, cg, cu, e in items: A(f"v_pk_mul_f32 {vr(e,2)}, {vr(G,2)}, {Pp} op_sel:[0,1] op_sel_hi:[1,1]")
            for G, U, cg, cu, e in items: A(f"v_exp_f32 v{e}, v{e}\n v_exp_f32 v{e+1}, v{e+1}")
            for G, U, cg, cu, e in items: A(f"v_pk_fma_f32 {vr(U,2)}, {vr(cu,2)}, {Pp}, {vr(U,2)} op_sel_hi:[1,0,1]")
            for G, U, cg, cu, e in items: A(f"v_pk_fma_f32 {vr(e,2)}, {vr(e,2)}, {Q}, {Q} op_sel:[0,{b},{b}] op_sel_hi:[1,{b},{b}]")
            for G, U, cg, cu, e in items: A(f"v_rcp_f32 v{e}, v{e}\n v_rcp_f32 v{e+1}, v{e+1}")
            for G, U, cg, cu, e in items: A(f"v_pk_mul_f32 {vr(U,2)}, {vr(U,2)}, {vr(G,2)}")
            for G, U, cg, cu, e in items: A(f"v_pk_mul_f32 {vr(U,2)}, {vr(U,2)}, {vr(e,2)}")
            for k, (G, U, cg, cu, e) in enumerate(items): A(f"v_cvt_pk_bf16_f32 v{O+k}, v{U}, v{U+1}")
            A.vmem(f"buffer_store_dwordx4 {vr(O,4)}, v{V_L16}, s[{S_WS}:{S_WS+3}], s{S_O0 if jp == 0 else S_O1} offen offset:{i*1024} sc1", ('hf', jp, i))
            if extra: extra(jp, i)

    def publish(self):
        A = self.A
        A(f"""
        s_lshl_b32 s{S_A}, s{S_RT}, 5
        s_add_u32 s{S_A}, s{S_A}, s{S_GID}
        s_lshl_b32 s{S_A}, s{S_A}, 2
        s_add_u32 s{S_A}, s{S_A}, {WS_FLAGS}
        v_mov_b32 v1, 1
        v_mov_b32 v2, 0
        """)
        A.drain_vm()
        A("s_mov_b64 exec, 1")
        A.vmem(f"buffer_store_dword v1, v2, s[{S_WS}:{S_WS+3}], s{S_A} offen sc1")
        A("s_mov_b64 exec, -1")

    def body_x(self):
        A = self.A
        cb = [64]
        self.job_loads(1)
        d0 = self.dma_stage_now(0, True)
        self.job_compute(1, cb)
        self.dma_stage_now(1, True)
        self.s_consts(1, cb)
        self.stamp(1)
        A.wait_vm([d0], force=True)
        A("s_barrier")
        self.stamp(2)
        self.main1(True)
        self.stamp(3)
        st = [48, 56, 76, 84]
        self.s_stats_read(st)
        A.wait_lg([('ss', 3, 1)])
        CQ = 92
        self.s_part_a(0, 16, 64, st, 4, CQ)
        self.w2_more(6)
        PS, QS, CS, E = 48, 56, 96, 112
        self.f_setup(PS, QS)
        self.f_cs_read(0, CS)
        VA, R = 76, 128
        def extra(jp, i):
            self.w2_more(3)
            if jp == 1 and i == 1:
                self.fin_addr(VA)
                self.fin_issue(0, VA, 144)
        self.f_part(0, PS, QS, CS, E, extra)
        self.f_cs_read(1, CS)
        self.f_part(1, PS, QS, CS, E, extra)
        self.stamp(4)
        self.s_tr_addr()
        self.s_hoff(0, S_O0)
        self.s_part_b(0, 16, 64, CQ, VA, 144, 84, S_O0)
        self.w2_more(100)
        self.stamp(5)
        self.publish()

    def body_y(self):
        A = self.A
        cb = [64, 192, 204]
        self.colsum_job()
        self.job_loads(3)
        d0 = self.dma_stage_now(0, False)
        self.job_compute(3, cb)
        self.dma_stage_now(1, False)
        self.s_consts(3, cb)
        self.stamp(1)
        A.wait_vm([d0], force=True)
        A("s_barrier")
        self.stamp(2)
        self.main1(False)
        self.stamp(3)
        st = [48, 56, 76, 84]
        self.s_stats_read(st)
        A.wait_lg([('ss', 3, 1)])
        ubs = [16, 96, 128]
        CQs = [216, 218, 220]
        for u in range(3):
            self.s_part_a(u, ubs[u], cb[u], st, 224, CQs[u])
            self.w2_more(8)
        self.w2_more(100)
        self.stamp(4)
        VA = 76
        self.fin_addr(VA)
        self.s_tr_addr()
        Ld = self.lab("yd")
        for u in range(3):
            if u: A(f"s_add_u32 s{S_A}, s{S_SU0}, {u}\n s_cmp_ge_u32 s{S_A}, 40\n s_cbranch_scc1 {Ld}")
            self.fin_issue(u, VA, 160)
            self.s_hoff(u, S_O0)
            self.s_part_b(u, ubs[u], cb[u], CQs[u], VA, 160, 84, S_O0)
        A(f"{Ld}:")
        self.stamp(5)
        self.publish()

    def phase2(self):
        A = self.A
        HD = 6
        HB, AC2, BS = 80, 176, 16
        A.vm = [('w2', n, j) for n in range(12) for j in range(5)] + ['flagst']; A.vm_done = 60
        A.lg = []; A.lg_done = 0
        A(f"""
        v_lshrrev_b32 v1, 2, v0               ; rho
        v_and_b32 v2, 3, v0                   ; c
        v_lshrrev_b32 v3, 2, v1
        v_and_b32 v4, 3, v1
        v_lshl_add_u32 v3, v3, 4, v4
        s_lshl_b32 s{S_A}, s{S_WAVE}, 2
        s_lshl_b32 s{S_Bq}, s{S_RT2}, 6
        s_add_u32 s{S_A}, s{S_A}, s{S_Bq}
        v_add_u32 v3, s{S_A}, v3
        v_lshlrev_b32 v5, 3, v3
        s_mul_i32 s{S_A}, s{S_CT}, 160
        v_lshl_add_u32 v6, v2, 3, s{S_A}
        v_mul_u32_u24 v7, 1280, v3
        v_add_u32 v7, v7, v6                  ; x offset
        v_lshlrev_b32 v8, 1, v7
        """)
        self.srd(S_T0, P_X, None, 2048 * 1280)
        self.srd(S_T1, P_DSK, None, 1280)
        A.vmem(f"buffer_load_dwordx2 v[36:37], v5, s[{S_WS}:{S_WS+3}], 0 offen sc1", 'e_st')
        for j in range(5):
            A.vmem(f"buffer_load_dwordx2 {vr(40 + 2*j, 2)}, v7, s[{S_T0}:{S_T0+3}], 0 offen offset:{32*j}", ('e_x', j))
            A.vmem(f"buffer_load_dwordx2 {vr(50 + 2*j, 2)}, v6, s[{S_T1}:{S_T1+3}], 0 offen offset:{32*j}", ('e_d', j))
        Lp, Lok = self.lab("hp"), self.lab("hok")
        A(f"""
        v_and_b32 v9, 31, v0
        v_lshlrev_b32 v9, 2, v9
        s_lshl_b32 s{S_C}, s{S_RT2}, 7
        s_add_u32 s{S_C}, s{S_C}, {WS_FLAGS}
        """)
        A(f"""
        v_and_b32 v10, 15, v0
        v_lshrrev_b32 v11, 4, v0
        v_bfe_u32 v12, v0, 1, 2
        v_xor_b32 v11, v11, v12
        v_mul_u32_u24 v10, 320, v10
        v_lshl_add_u32 v10, v11, 4, v10
        s_mul_i32 s{S_A}, s{S_WAVE}, 20480
        v_add_u32 v10, s{S_A}, v10
        v_bfe_u32 v12, v1, 1, 2
        v_xor_b32 v12, v12, v2
        v_mul_u32_u24 v11, 320, v1
        v_lshl_add_u32 v11, v12, 4, v11
        s_mul_i32 s{S_A}, s{S_WAVE}, 5120
        v_add_u32 v11, s{S_A}, v11
        v_add_u32 v12, 61440, v11             ; wave 3
        s_mov_b32 s{S_A}, 0xffff0000
        """)
        A.wait_vm([('e_d', 4)])
        for j in range(5):
            for h in range(2):
                xr, dr, o = 40 + 2*j + h, 50 + 2*j + h, BS + 4*j + 2*h
                A(f"""
                v_lshlrev_b32 v{o}, 16, v{xr}
                v_and_b32 v{o+1}, s{S_A}, v{xr}
                v_lshlrev_b32 v60, 16, v{dr}
                v_and_b32 v61, s{S_A}, v{dr}
                v_pk_add_f32 v[62:63], {vr(o,2)}, v[36:37] op_sel_hi:[1,0]
                v_pk_mul_f32 v[62:63], v[62:63], v[36:37] op_sel:[0,1] op_sel_hi:[1,1]
                v_pk_fma_f32 {vr(o,2)}, v[62:63], v[60:61], {vr(o,2)}
                """)
        self.srd(S_T0, P_OUT, None, 2048 * 2560)
        A(f"""
        s_mov_b32 s{S_SPIN}, 0
        {Lp}:
        buffer_load_dword v13, v9, s[{S_WS}:{S_WS+3}], s{S_C} offen sc1
        s_add_u32 s{S_SPIN}, s{S_SPIN}, 1
        s_cmp_gt_u32 s{S_SPIN}, {SPIN_MAX}
        s_cbranch_scc1 {Lok}
        s_waitcnt vmcnt(0)
        v_cmp_ne_u32 vcc, 1, v13
        s_nop 0
        s_cbranch_vccnz {Lp}
        {Lok}:
        """)
        self.stamp(6)
        def h_load(n, i):
            sc = []
            so = S_O0 if n % 2 == 0 else S_O1
            if i == 0:
                sc = [f"s_add_u32 s{so}, s{S_OOB}, {n*4096}"] if n in (6, 13) else [f"s_mov_b32 s{so}, {n*4096}"]
            d = HB + (n % HD) * 16 + 4 * i
            return sc, f"buffer_load_dwordx4 {vr(d,4)}, v{V_L16}, s[{S_H}:{S_H+3}], s{so} offen offset:{i*1024} sc1", ('h', n, i)
        for n in range(HD - 1):
            for i in range(4):
                sc, t, rid = h_load(n, i)
                for tt in sc: A(tt)
                A.vmem(t, rid)
        S = Sched()
        NT = 3
        def mf(n, i, j):
            acc = vr(AC2 + (j*4 + i)*4, 4)
            c = acc if n else "0"
            return S.mfma(f"v_mfma_f32_16x16x32_bf16 {acc}, {ar((n % 12)*20 + 4*j, 4)}, {vr(HB + (n % HD)*16 + 4*i, 4)}, {c}", (), [('h', n, i), ('w2', n, j)])
        for n in range(24 - NT):
            g0 = len(S.m)
            for i in range(4):
                for j in range(5): mf(n, i, j)
            ops = []
            if n + HD - 1 < 24: ops += [h_load(n + HD - 1, i) for i in range(4)]
            if n >= 1 and n + 11 < 24: ops += [self.w2_load(n + 11, j) for j in range(5)]
            for k, (sc, t, rid) in enumerate(ops):
                g = g0 + 1 + 2 * k
                for tt in sc: S.scalar(g - 1, tt)
                S.vmem(g, t, rid)
        pend = []
        for i in range(4):
            for j in range(5):
                for n in range(24 - NT, 24): g = mf(n, i, j)
                pend.append((g, i, j))
        nm = len(S.m)
        late = []
        for g, i, j in pend:
            t = f"ds_write_b128 v10, {vr(AC2 + (j*4 + i)*4, 4)} offset:{i*5120 + j*64}"
            if g + 8 < nm: S.ds(g + 8, t, ('pw', i, j))
            else: late.append((t, ('pw', i, j)))
        S.emit(A)
        A("s_nop 7")
        for t, rid in late: A.ds(t, rid)
        A.drain_lg()
        A("s_barrier")
        self.stamp(7)
        for j in range(5):
            for w in range(4):
                d = 80 + (j*4 + w) * 4
                if w < 3: A.ds(f"ds_read_b128 {vr(d,4)}, v11 offset:{w*20480 + j*64}", ('pr', j, w))
                else: A.ds(f"ds_read_b128 {vr(d,4)}, v12 offset:{j*64}", ('pr', j, w))
        for j in range(5):
            A.wait_lg([('pr', j, 3)])
            d = 80 + j * 16; o = BS + 4 * j
            for h in (0, 2):
                A(f"v_pk_add_f32 {vr(d+h,2)}, {vr(d+h,2)}, {vr(d+4+h,2)}\n v_pk_add_f32 {vr(d+8+h,2)}, {vr(d+8+h,2)}, {vr(d+12+h,2)}")
            for h in (0, 2):
                A(f"v_pk_add_f32 {vr(o+h,2)}, {vr(o+h,2)}, {vr(d+h,2)}")
            for h in (0, 2):
                A(f"v_pk_add_f32 {vr(o+h,2)}, {vr(o+h,2)}, {vr(d+8+h,2)}")
            A.vmem(f"buffer_store_dwordx4 {vr(o,4)}, v8, s[{S_T0}:{S_T0+3}], 0 offen offset:{64*j} sc1")
        if self.prof:
            self.stamp(8)
            A.drain_vm()
            self.stamp(9)
            A(f"s_lshl_b32 s{S_A}, s{S_JW}, 8\n s_add_u32 s{S_A}, s{S_A}, {WS_PROF}\n v_lshlrev_b32 v1, 2, v0")
            A(f"buffer_store_dword v{self.vprof}, v1, s[{S_WS}:{S_WS+3}], s{S_A} offen")
        if self.amp >= 0:
            A(f"""
            v_readlane_b32 s{S_A}, v{self.vprof}, 0
            v_readlane_b32 s{S_Bq}, v{self.vprof}, {self.amp}
            s_nop 4
            s_sub_u32 s{S_Bq}, s{S_Bq}, s{S_A}
            """)
            if self.who: A(f"s_cmp_{'lt' if self.who == 1 else 'ge'}_u32 s{S_GID}, 27\n s_cselect_b32 s{S_Bq}, s{S_Bq}, 0")
            A(f"""
            s_add_u32 s{S_Bq}, s{S_Bq}, 6000
            L_amp:
            s_memrealtime s[{S_ST}:{S_ST+1}]
            s_waitcnt lgkmcnt(0)
            s_sub_u32 s{S_C}, s{S_ST}, s{S_A}
            s_cmp_lt_u32 s{S_C}, s{S_Bq}
            s_cbranch_scc1 L_amp
            """)

    def build(self):
        A = self.A
        self.vprof = 79 if False else 15
        if self.prof:
            global V_P
            V_P = 94
        self.prologue()
        A(f"s_cmp_ge_u32 s{S_GID}, 27\n s_cbranch_scc1 L_y")
        snap = A.snapshot()
        self.body_x()
        A("L_p2:")
        self.phase2()
        A("L_end:\n s_endpgm")
        A.restore(snap)
        A("L_y:")
        self.body_y()
        A("s_branch L_p2")
        head = open("cdna_kernels/" + NAME + ".s.ref").read().split("; Override launch")[0]
        return f"""{head}; One persistent launch: 256 workgroups x 4 waves, one per CU (file generated by a script).
; @launch grid=(256,1,1) block=(256,1,1) lds={LDS_BYTES}
.amdgcn_target "amdgcn-amd-amdhsa--gfx950"
.text
.globl {KNAME}
.p2align 8
.type {KNAME},@function
{KNAME}:
{A.text()}
.section .rodata,"a"
.p2align 6
.amdhsa_kernel {KNAME}
  .amdhsa_next_free_vgpr 512
  .amdhsa_next_free_sgpr 102
  .amdhsa_accum_offset 256
  .amdhsa_group_segment_fixed_size 0
  .amdhsa_kernarg_size 128
  .amdhsa_user_sgpr_count 2
  .amdhsa_user_sgpr_kernarg_segment_ptr 1
  .amdhsa_system_sgpr_workgroup_id_x 1
  .amdhsa_float_denorm_mode_32 3
.end_amdhsa_kernel
"""


if __name__ == "__main__":
    out = sys.argv[1] if len(sys.argv) > 1 else "k.s"
    kw = {}
    for a in sys.argv[2:]:
        k, v = a.split("=")
        kw[k] = int(v)
    open(out, "w").write(Gen(**kw).build())
```

```python
import sys
from asmlib import *

NAME = "parallel_sum__ssm_conv_s5__swiglu_ffn__prompt"
KNAME = NAME + "_kernel"

WS_STATS = 0x0
WS_CSG = 0x4000
WS_CSU = 0x6000
WS_CSB = 0x8000
WS_FLAGS = 0xA000
WS_FIN = 0x10000
WS_W2P = 0x100000
WS_H = 0x500000
WS_PROF = 0x1200000
WS_SIZE = 0x10000000
SENT = 0x7FA5A5A5

XSLOT = 8192
WBASE = 65536
WSLOT = 20480
SPARE = 126976
SP_W = 9216
LDS_BYTES = 163840

S_X, S_B, S_G, S_U, S_WS, S_T0, S_T1, S_H, S_W2 = 4, 8, 12, 16, 20, 24, 28, 32, 36
S_WAVE, S_RB, S_GID, S_LX, S_LW, S_O0, S_O1, S_KX, S_SP, S_RT, S_SU0, S_JW = range(40, 52)
S_RT2, S_CT, S_OOB, S_SPIN = 52, 53, 54, 55
S_A, S_Bq, S_C, S_D = 56, 57, 58, 59
S_M1, S_M2, S_M3 = 60, 62, 96
P = 64
P_X, P_LRE, P_LIM, P_BRE, P_BIM, P_CRE, P_CIM, P_LDT, P_DSK, P_BX, P_G, P_U, P_WD, P_OUT, P_DBG, P_WS = [P + 2 * i for i in range(16)]
S_ST = 98
S_PROF = 100

V_XD0, V_XD1, V_BD, V_WD0, V_WD1, V_XR0, V_XR1, V_BR0, V_BR1, V_WR = 1, 2, 3, 4, 5, 6, 7, 8, 9, 10
V_L16, V_P = 14, 15
XB, WB, ACC = 16, 48, 96
def accreg(j, i): return ACC + (j * 4 + i) * 4
SPIN_MAX = 200000


class Gen:
    def __init__(self, prof=False, p2map=1, amp=-1, who=0, probe=0, amp0=0, ampk=1):
        self.A = Asm()
        self.prof = prof
        self.p2map = p2map
        self.amp = amp; self.who = who; self.probe = probe; self.amp0 = amp0; self.ampk = ampk
        if amp >= 0: self.prof = True
        self.nlab = 0

    def lab(self, base):
        self.nlab += 1
        return f"L_{base}_{self.nlab}"

    def stamp(self, idx):
        if not self.prof: return
        A = self.A
        A(f"s_memrealtime s[{S_ST}:{S_ST+1}]")
        A.drain_lg()
        A(f"v_writelane_b32 v{self.vprof}, s{S_ST}, {idx}")

    def srd(self, s, base, off=None, size=None, size_reg=None):
        A = self.A
        if off is None:
            A(f"s_mov_b32 s{s}, s{base}\n s_mov_b32 s{s+1}, s{base+1}")
        else:
            A(f"s_add_u32 s{s}, s{base}, {off}\n s_addc_u32 s{s+1}, s{base+1}, 0")
        A(f"s_mov_b32 s{s+2}, {size if size_reg is None else size_reg}\n s_mov_b32 s{s+3}, 0x20000")

    def cmul(self, D, X, Y):
        A = self.A
        A(f"v_pk_mul_f32 {vr(D,2)}, {vr(Y,2)}, {vr(X,2)} op_sel_hi:[1,0]")
        A(f"v_pk_fma_f32 {vr(D,2)}, {vr(Y,2)}, {vr(X,2)}, {vr(D,2)} op_sel:[1,1,0] op_sel_hi:[0,1,1] neg_lo:[1,0,0]")

    def cfma_ops(self, D, X, Y, Z):
        return [f"v_pk_fma_f32 {vr(D,2)}, {vr(Y,2)}, {vr(X,2)}, {vr(Z,2)} op_sel:[1,1,0] op_sel_hi:[0,1,1] neg_lo:[1,0,0]",
                f"v_pk_fma_f32 {vr(D,2)}, {vr(Y,2)}, {vr(X,2)}, {vr(D,2)} op_sel_hi:[1,0,1]"]

    def cfma(self, D, X, Y, Z):
        for t in self.cfma_ops(D, X, Y, Z): self.A(t)

    def prologue(self):
        A = self.A
        A(f"s_cmp_ge_u32 s2, 256\n s_cbranch_scc1 L_end")
        if self.prof: A(f"s_memrealtime s[{S_ST}:{S_ST+1}]")
        A(f"s_load_dwordx16 s[{P}:{P+15}], s[0:1], 0\n s_load_dwordx16 s[{P+16}:{P+31}], s[0:1], 64")
        A(f"v_lshrrev_b32 v16, 6, v0\n v_and_b32 v0, 63, v0\n v_readfirstlane_b32 s{S_WAVE}, v16")
        A(f"""
        s_and_b32 s{S_A}, s2, 1
        s_lshl_b32 s{S_A}, s{S_A}, 2
        s_bfe_u32 s{S_Bq}, s2, 0x20003
        s_add_u32 s{S_RB}, s{S_A}, s{S_Bq}
        s_lshr_b32 s{S_A}, s2, 5
        s_lshl_b32 s{S_A}, s{S_A}, 2
        s_bfe_u32 s{S_Bq}, s2, 0x20001
        s_add_u32 s{S_GID}, s{S_A}, s{S_Bq}
        s_lshl_b32 s{S_RT}, s{S_RB}, 2
        s_add_u32 s{S_RT}, s{S_RT}, s{S_WAVE}
        s_lshl_b32 s{S_JW}, s2, 2
        s_add_u32 s{S_JW}, s{S_JW}, s{S_WAVE}
        s_sub_u32 s{S_A}, s{S_GID}, 27
        s_mul_i32 s{S_A}, s{S_A}, 3
        s_add_u32 s{S_A}, s{S_A}, 27
        s_cmp_lt_u32 s{S_GID}, 27
        s_cselect_b32 s{S_SU0}, s{S_GID}, s{S_A}
        s_lshl_b32 s{S_LX}, s{S_WAVE}, 14
        s_mul_i32 s{S_LW}, s{S_WAVE}, 5120
        s_add_u32 s{S_LW}, s{S_LW}, {WBASE}
        s_mul_i32 s{S_SP}, s{S_WAVE}, {SP_W}
        s_add_u32 s{S_SP}, s{S_SP}, {SPARE}
        s_cmp_eq_u32 s{S_WAVE}, 3
        s_cselect_b32 s{S_OOB}, 0x40000000, 0
        s_mov_b32 s{S_M1}, 0xffff0000
        s_mov_b32 s{S_M1+1}, 0
        s_mov_b32 s{S_M2}, 0
        s_mov_b32 s{S_M2+1}, 0xffff
        s_mov_b32 s{S_M3}, 0
        s_mov_b32 s{S_M3+1}, 0xffff0000
        """)
        if self.p2map == 1:
            A(f"""
            s_and_b32 s{S_A}, s2, 7
            s_lshl_b32 s{S_A}, s{S_A}, 2
            s_bfe_u32 s{S_Bq}, s2, 0x20003
            s_add_u32 s{S_RT2}, s{S_A}, s{S_Bq}
            s_lshr_b32 s{S_CT}, s2, 5
            """)
        else:
            A(f"""
            s_bfe_u32 s{S_A}, s2, 0x20001
            s_lshl_b32 s{S_A}, s{S_A}, 3
            s_bfe_u32 s{S_Bq}, s2, 0x30003
            s_add_u32 s{S_RT2}, s{S_A}, s{S_Bq}
            s_and_b32 s{S_A}, s2, 1
            s_lshl_b32 s{S_A}, s{S_A}, 2
            s_lshr_b32 s{S_Bq}, s2, 6
            s_add_u32 s{S_CT}, s{S_A}, s{S_Bq}
            """)
        A(f"""
        v_lshlrev_b32 v{V_L16}, 4, v0
        v_lshrrev_b32 v16, 3, v0            ; l>>3
        v_and_b32 v17, 7, v0                ; l&7
        v_lshrrev_b32 v18, 4, v0            ; q = l>>4
        v_xor_b32 v19, v17, v18
        v_lshlrev_b32 v19, 4, v19
        v_lshrrev_b32 v20, 5, v0
        v_lshlrev_b32 v20, 4, v20
        v_and_b32 v21, 3, v16
        v_add_u32 v20, v20, v21             ; 16*(l>>5) + ((l>>3)&3)
        v_mul_u32_u24 v20, 1280, v20
        v_add_u32 v{V_XD0}, v20, v19
        v_xor_b32 v{V_XD1}, 64, v{V_XD0}
        v_add_u32 v{V_XD1}, {32*1280 - 1024}, v{V_XD1}
        s_and_b32 s{S_A}, s{S_WAVE}, 1
        s_lshl_b32 s{S_Bq}, s{S_A}, 6
        s_mul_i32 s{S_A}, s{S_A}, {8*1280}
        v_mul_u32_u24 v22, 1280, v16        ; (l>>3)*1280
        v_xor_b32 v23, s{S_Bq}, v19
        v_add3_u32 v{V_BD}, v22, v23, s{S_A}
        v_lshl_add_u32 v47, v17, 4, v22
        v_and_b32 v22, 1, v18
        v_lshlrev_b32 v22, 1, v22
        v_xor_b32 v22, v22, v17
        v_lshlrev_b32 v22, 4, v22
        v_mul_u32_u24 v23, 3456, v16
        v_add_u32 v{V_WD0}, v22, v23
        v_xor_b32 v{V_WD1}, 64, v{V_WD0}
        v_add_u32 v{V_WD1}, {8*3456 - 1024}, v{V_WD1}
        v_lshl_add_u32 v46, v17, 4, v23
        v_and_b32 v22, 15, v0               ; row = l&15
        v_lshrrev_b32 v23, 1, v22
        v_xor_b32 v23, v23, v18
        v_lshlrev_b32 v23, 4, v23
        v_lshl_add_u32 v24, v22, 7, v23
        v_add_u32 v{V_XR0}, s{S_LX}, v24
        v_xor_b32 v{V_XR1}, 64, v{V_XR0}
        v_lshrrev_b32 v25, 3, v22
        v_mul_u32_u24 v25, {5120 - 1024}, v25
        v_add_u32 v24, v24, v25
        v_add_u32 v{V_BR0}, {WBASE}, v24
        v_xor_b32 v{V_BR1}, 64, v{V_BR0}
        v_lshrrev_b32 v23, 2, v22           ; r
        v_and_b32 v24, 3, v0
        v_lshlrev_b32 v24, 3, v24
        v_lshl_add_u32 v24, v23, 7, v24     ; r*128 + 8c
        v_lshrrev_b32 v25, 1, v18
        v_mul_u32_u24 v25, 5120, v25
        v_and_b32 v26, 1, v18
        v_lshl_add_u32 v25, v26, 10, v25
        v_add_u32 v25, v24, v25
        v_lshrrev_b32 v23, 1, v23
        v_lshl_or_b32 v23, v26, 1, v23
        v_lshl_add_u32 v25, v23, 5, v25
        v_add_u32 v{V_WR}, {WBASE}, v25
        v_xor_b32 v{V_WR+1}, 32, v{V_WR}
        v_xor_b32 v{V_WR+2}, 64, v{V_WR}
        v_xor_b32 v{V_WR+3}, 0x60, v{V_WR}
        """)
        A("s_waitcnt lgkmcnt(0)")
        if self.prof:
            A(f"v_mov_b32 v{self.vprof}, 0\n v_writelane_b32 v{self.vprof}, s{S_ST}, 0")
        A(f"s_mul_i32 s{S_A}, s{S_RT}, {64*1280}")
        self.srd(S_X, P_X, f"s{S_A}", 64 * 1280)
        A(f"""
        s_cmp_lt_u32 s{S_WAVE}, 2
        s_cselect_b32 s{S_B}, s{P_BRE}, s{P_BIM}
        s_cselect_b32 s{S_B+1}, s{P_BRE+1}, s{P_BIM+1}
        s_mul_i32 s{S_A}, s{S_SU0}, {16*1280}
        s_add_u32 s{S_B}, s{S_B}, s{S_A}
        s_addc_u32 s{S_B+1}, s{S_B+1}, 0
        s_sub_u32 s{S_B+2}, {640*1280}, s{S_A}
        s_mov_b32 s{S_B+3}, 0x20000
        s_min_u32 s{S_A}, s{S_GID}, 26
        s_lshl_b32 s{S_A}, s{S_A}, 7
        s_mul_i32 s{S_Bq}, s{S_WAVE}, {16*3456}
        s_add_u32 s{S_A}, s{S_A}, s{S_Bq}
        s_sub_u32 s{S_Bq}, {640*3456}, s{S_A}
        """)
        self.srd(S_G, P_G, f"s{S_A}", size_reg=f"s{S_Bq}")
        self.srd(S_U, P_U, f"s{S_A}", size_reg=f"s{S_Bq}")
        self.srd(S_WS, P_WS, None, WS_SIZE)
        A(f"""
        s_mul_i32 s{S_A}, s{S_RT2}, {96*4096}
        s_mul_i32 s{S_Bq}, s{S_WAVE}, {24*4096}
        s_add_u32 s{S_A}, s{S_A}, s{S_Bq}
        s_add_u32 s{S_A}, s{S_A}, {WS_H}
        """)
        self.srd(S_H, P_WS, f"s{S_A}", 24 * 4096)
        A(f"""
        s_mul_i32 s{S_A}, s{S_CT}, {96*5120}
        s_mul_i32 s{S_Bq}, s{S_WAVE}, {24*5120}
        s_add_u32 s{S_A}, s{S_A}, s{S_Bq}
        s_add_u32 s{S_A}, s{S_A}, {WS_W2P}
        """)
        self.srd(S_W2, P_WS, f"s{S_A}", 24 * 5120)

    def colsum_job(self):
        A = self.A
        order = [3, 4, 5, 6, 7, 8, 9, 0, 1, 2]
        Lb, Ld = self.lab("csb"), self.lab("csd")
        A(f"""
        s_mul_i32 s{S_A}, s{S_RB}, 5
        s_add_u32 s{S_A}, s{S_A}, s{S_GID}
        s_sub_u32 s{S_C}, s{S_A}, 27          ; yw
        s_cmp_ge_u32 s{S_C}, 27
        s_cbranch_scc1 {Lb}
        s_cmp_lt_u32 s{S_WAVE}, 2
        s_cselect_b32 s{S_T0}, s{P_G}, s{P_U}
        s_cselect_b32 s{S_T0+1}, s{P_G+1}, s{P_U+1}
        s_and_b32 s{S_A}, s{S_WAVE}, 1
        s_mul_i32 s{S_A}, s{S_A}, {32*3456}
        s_lshl_b32 s{S_Bq}, s{S_C}, 7
        s_add_u32 s{S_A}, s{S_A}, s{S_Bq}
        s_add_u32 s{S_T0}, s{S_T0}, s{S_A}
        s_addc_u32 s{S_T0+1}, s{S_T0+1}, 0
        s_sub_u32 s{S_T0+2}, {640*3456}, s{S_A}
        s_mov_b32 s{S_T0+3}, 0x20000
        """)
        snap = A.snapshot()
        for n, s in enumerate(order):
            for k in range(4):
                A(f"s_mov_b32 s{S_O0}, {(64*s + 8*k) * 3456}")
                A.vmem(f"buffer_load_dwordx4 {vr(96 + 16*n + 4*k, 4)}, v46, s[{S_T0}:{S_T0+3}], s{S_O0} offen", ('cs', n, k))
        A(f"s_mov_b32 s{S_A}, 0x00003f80\n s_mov_b32 s{S_Bq}, 0x3f800000")
        for e in range(8): A(f"v_mov_b32 v{16+e}, 0")
        for n in range(10):
            for k in range(4):
                A.wait_vm([('cs', n, k)])
                for e in range(4):
                    r = 96 + 16*n + 4*k + e
                    A(f"v_dot2_f32_bf16 v{16+2*e}, v{r}, s{S_A}, v{16+2*e}\n v_dot2_f32_bf16 v{17+2*e}, v{r}, s{S_Bq}, v{17+2*e}")
        A(f"v_lshlrev_b32 v24, 5, v0\n v_add_u32 v24, s{S_SP}, v24\n s_nop 1")
        A.ds(f"ds_write_b128 v24, v[16:19] offset:6144")
        A.ds(f"ds_write_b128 v24, v[20:23] offset:6160")
        A.drain_lg()
        A(f"s_barrier\n s_cmp_ge_u32 s{S_WAVE}, 2\n s_cbranch_scc1 {Ld}")
        A(f"s_mul_i32 s{S_A}, s{S_WAVE}, {2*SP_W}\n s_add_u32 s{S_A}, s{S_A}, {SPARE}\n v_lshl_add_u32 v24, v0, 2, s{S_A}")
        for h in range(2):
            for k in range(8):
                A.ds(f"ds_read_b32 v{96 + 8*h + k}, v24 offset:{6144 + h*SP_W + k*256}")
        A.drain_lg()
        for st in (8, 4, 2, 1):
            for k in range(st): A(f"v_add_f32 v{96+k}, v{96+k}, v{96+k+st}")
        A(f"""
        s_lshl_b32 s{S_A}, s{S_WAVE}, 13
        s_lshl_b32 s{S_Bq}, s{S_C}, 8
        s_add_u32 s{S_A}, s{S_A}, s{S_Bq}
        s_add_u32 s{S_A}, s{S_A}, {WS_CSG}
        v_lshlrev_b32 v24, 2, v0
        buffer_store_dword v96, v24, s[{S_WS}:{S_WS+3}], s{S_A} offen sc1
        s_branch {Ld}
        """)
        A.restore(snap)
        A(f"""
        {Lb}:
        s_cmp_ge_u32 s{S_C}, 37
        s_cbranch_scc1 {Ld}
        s_sub_u32 s{S_C}, s{S_C}, 27
        s_lshl_b32 s{S_C}, s{S_C}, 2
        s_add_u32 s{S_C}, s{S_C}, s{S_WAVE}   ; idx 0..39
        s_cmp_lt_u32 s{S_C}, 20
        s_cselect_b32 s{S_T0}, s{P_BRE}, s{P_BIM}
        s_cselect_b32 s{S_T0+1}, s{P_BRE+1}, s{P_BIM+1}
        s_cselect_b32 s{S_A}, 0, 20
        s_cselect_b32 s{S_D}, 0, 0x1000
        s_add_u32 s{S_D}, s{S_D}, {WS_CSB}
        s_sub_u32 s{S_C}, s{S_C}, s{S_A}
        s_mul_i32 s{S_A}, s{S_C}, {32*1280}
        s_add_u32 s{S_T0}, s{S_T0}, s{S_A}
        s_addc_u32 s{S_T0+1}, s{S_T0+1}, 0
        s_mov_b32 s{S_T0+2}, {32*1280}
        s_mov_b32 s{S_T0+3}, 0x20000
        """)
        for n, s in enumerate(order):
            for k in range(4):
                A(f"s_mov_b32 s{S_O0}, {k*8*1280 + s*128}")
                A.vmem(f"buffer_load_dwordx4 {vr(96 + 16*n + 4*k, 4)}, v47, s[{S_T0}:{S_T0+3}], s{S_O0} offen", ('cb', n, k))
        A(f"s_mov_b32 s{S_A}, 0x3f803f80")
        for e in range(4): A(f"v_mov_b32 v{16+e}, 0")
        for n in range(10):
            for k in range(4):
                A.wait_vm([('cb', n, k)])
                for e in range(4):
                    A(f"v_dot2_f32_bf16 v{16+k}, v{96 + 16*n + 4*k + e}, s{S_A}, v{16+k}")
        A("s_nop 2")
        for dpp in ("quad_perm:[1,0,3,2]", "quad_perm:[2,3,0,1]", "row_half_mirror"):
            for k in range(4): A(f"v_add_f32_dpp v{16+k}, v{16+k}, v{16+k} {dpp} row_mask:0xf bank_mask:0xf")
        A(f"""
        s_lshl_b32 s{S_C}, s{S_C}, 7
        s_add_u32 s{S_D}, s{S_D}, s{S_C}
        v_lshrrev_b32 v24, 3, v0
        v_lshlrev_b32 v24, 2, v24
        s_mov_b32 exec_lo, 0x01010101
        s_mov_b32 exec_hi, 0x01010101
        """)
        for k in range(4):
            A(f"buffer_store_dword v{16+k}, v24, s[{S_WS}:{S_WS+3}], s{S_D} offen offset:{32*k} sc1")
        A(f"s_mov_b64 exec, -1\n {Ld}:")
        A.restore(snap)

    def job_loads(self, nunits):
        A = self.A
        A(f"""
        s_cmp_lt_u32 s{S_JW}, 540
        s_cselect_b32 s{S_A}, 0, 540
        s_cselect_b32 s{S_T0}, s{P_WD}, s{P_CRE}
        s_cselect_b32 s{S_T0+1}, s{P_WD+1}, s{P_CRE+1}
        s_cselect_b32 s{S_T1}, s{P_WD}, s{P_CIM}
        s_cselect_b32 s{S_T1+1}, s{P_WD+1}, s{P_CIM+1}
        s_cselect_b32 s{S_O1}, {16*1280}, 0
        s_add_u32 s{S_O0}, s{S_O1}, {16*1280}
        s_sub_u32 s{S_A}, s{S_JW}, s{S_A}
        s_min_u32 s{S_A}, s{S_A}, 539
        s_mul_i32 s{S_C}, s{S_A}, 6554
        s_lshr_b32 s{S_C}, s{S_C}, 16
        s_mul_i32 s{S_Bq}, s{S_C}, 10
        s_sub_u32 s{S_D}, s{S_A}, s{S_Bq}      ; a
        s_mul_i32 s{S_A}, s{S_C}, s{S_O0}
        s_lshl_b32 s{S_Bq}, s{S_D}, 7
        s_add_u32 s{S_A}, s{S_A}, s{S_Bq}
        s_cmp_lt_u32 s{S_JW}, 940
        s_cselect_b32 s{S_A}, s{S_A}, 0
        s_cselect_b32 s{S_T0+2}, {15*1280 + 128}, 0
        s_cselect_b32 s{S_T1+2}, {15*1280 + 128}, 0
        s_add_u32 s{S_T0}, s{S_T0}, s{S_A}
        s_addc_u32 s{S_T0+1}, s{S_T0+1}, 0
        s_add_u32 s{S_A}, s{S_A}, s{S_O1}
        s_add_u32 s{S_T1}, s{S_T1}, s{S_A}
        s_addc_u32 s{S_T1+1}, s{S_T1+1}, 0
        s_mov_b32 s{S_T0+3}, 0x20000
        s_mov_b32 s{S_T1+3}, 0x20000
        s_mov_b32 s{S_O0}, {8*1280}
        s_mov_b32 m0, s{S_SP}
        s_nop 0
        """)
        A.vmem(f"buffer_load_dwordx4 v47, s[{S_T0}:{S_T0+3}], 0 offen lds", 'jw0')
        A(f"s_add_u32 m0, s{S_SP}, 1024\n s_nop 0")
        A.vmem(f"buffer_load_dwordx4 v47, s[{S_T0}:{S_T0+3}], s{S_O0} offen lds", 'jw1')
        A(f"s_add_u32 m0, s{S_SP}, 2048\n s_nop 0")
        A.vmem(f"buffer_load_dwordx4 v47, s[{S_T1}:{S_T1+3}], 0 offen lds", 'jw2')
        A(f"s_add_u32 m0, s{S_SP}, 3072\n s_nop 0")
        A.vmem(f"buffer_load_dwordx4 v47, s[{S_T1}:{S_T1+3}], s{S_O0} offen lds", 'jw3')
        A(f"s_mul_i32 s{S_A}, s{S_JW}, 2560")
        self.srd(S_T0, P_X, f"s{S_A}", 2560)
        A(f"""
        v_lshrrev_b32 v16, 5, v0
        v_mul_u32_u24 v16, 1280, v16
        v_and_b32 v17, 31, v0
        v_lshl_add_u32 v16, v17, 4, v16
        v_mov_b32 v18, 0x7fff0000
        v_cmp_gt_u32 vcc, 16, v17
        v_and_b32 v19, 15, v0
        s_lshl_b32 s{S_A}, s{S_SU0}, 5
        v_cndmask_b32 v18, v18, v16, vcc
        v_lshl_add_u32 v19, v19, 1, s{S_A}
        """)
        A.vmem(f"buffer_load_dwordx4 v[96:99], v16, s[{S_T0}:{S_T0+3}], 0 offen", 'st0')
        A.vmem(f"buffer_load_dwordx4 v[100:103], v16, s[{S_T0}:{S_T0+3}], 0 offen offset:512", 'st1')
        A.vmem(f"buffer_load_dwordx4 v[104:107], v18, s[{S_T0}:{S_T0+3}], 0 offen offset:1024", 'st2')
        for k, ptr in enumerate((P_LRE, P_LIM, P_LDT)):
            self.srd(S_T1, ptr, None, 1280)
            for u in range(nunits):
                A.vmem(f"buffer_load_ushort v{112 + 3*u + k}, v19, s[{S_T1}:{S_T1+3}], 0 offen offset:{32*u}", ('lam', u, k))

    def job_compute(self, nunits, cbase):
        A = self.A
        Ls, Lst, Ln = self.lab("jS"), self.lab("jst"), self.lab("jn")
        A.wait_vm([('lam', nunits - 1, 2)])
        A(f"s_cmp_ge_u32 s{S_JW}, 540\n s_cbranch_scc1 {Ls}")
        A(f"""
        v_lshrrev_b32 v32, 2, v0              ; 4q + r
        v_and_b32 v33, 3, v0
        v_lshlrev_b32 v33, 3, v33
        v_lshl_add_u32 v32, v32, 7, v33
        v_add_u32 v32, s{S_SP}, v32
        """)
        for t in range(4):
            A(f"ds_read_b64_tr_b16 {vr(16+4*t,2)}, v32 offset:{32*t}\n ds_read_b64_tr_b16 {vr(18+4*t,2)}, v32 offset:{2048 + 32*t}")
        A(f"""
        s_lshr_b32 s{S_A}, s{S_C}, 1           ; g
        s_and_b32 s{S_Bq}, s{S_C}, 1           ; jp
        s_mul_i32 s{S_Bq}, s{S_Bq}, 7
        s_lshr_b32 s{S_O0}, s{S_A}, 2
        s_add_u32 s{S_Bq}, s{S_Bq}, s{S_O0}
        s_and_b32 s{S_A}, s{S_A}, 3
        s_mul_i32 s{S_A}, s{S_A}, 24
        s_add_u32 s{S_A}, s{S_A}, s{S_Bq}      ; step'
        s_mul_i32 s{S_A}, s{S_A}, 5120
        s_add_u32 s{S_A}, s{S_A}, {WS_W2P}
        s_lshl_b32 s{S_D}, s{S_D}, 2           ; T0 = 4a
        s_waitcnt lgkmcnt(0)
        """)
        for t in range(4):
            A(f"""
            s_mul_i32 s{S_Bq}, s{S_D}, 52
            s_lshr_b32 s{S_Bq}, s{S_Bq}, 8     ; ct = T/5
            s_mul_i32 s{S_O0}, s{S_Bq}, {96*5120 - 5*1024}
            s_lshl_b32 s{S_O1}, s{S_D}, 10
            s_add_u32 s{S_O0}, s{S_O0}, s{S_O1}
            s_add_u32 s{S_O0}, s{S_O0}, s{S_A}
            buffer_store_dwordx4 {vr(16+4*t,4)}, v{V_L16}, s[{S_WS}:{S_WS+3}], s{S_O0} offen sc1
            s_add_u32 s{S_D}, s{S_D}, 1
            """)
        A(f"s_branch {Ln}\n {Ls}:")
        A(f"""
        v_and_b32 v32, 15, v0
        v_lshrrev_b32 v33, 4, v0
        v_lshlrev_b32 v33, 3, v33
        v_lshl_add_u32 v32, v32, 7, v33
        v_add_u32 v32, s{S_SP}, v32
        """)
        for u in range(4):
            A(f"ds_read_b64 {vr(128+4*u,2)}, v32 offset:{32*u}\n ds_read_b64 {vr(130+4*u,2)}, v32 offset:{2048 + 32*u}")
        A(f"""
        s_mul_i32 s{S_Bq}, s{S_C}, 52
        s_lshr_b32 s{S_Bq}, s{S_Bq}, 8         ; ct
        s_mul_i32 s{S_O0}, s{S_Bq}, {96*5120 - 5*1024}
        s_lshl_b32 s{S_O1}, s{S_C}, 10
        s_add_u32 s{S_O0}, s{S_O0}, s{S_O1}
        s_add_u32 s{S_D}, s{S_D}, 14
        s_mul_i32 s{S_D}, s{S_D}, 5120
        s_add_u32 s{S_O0}, s{S_O0}, s{S_D}
        s_add_u32 s{S_O0}, s{S_O0}, {WS_W2P}
        s_cmp_lt_u32 s{S_JW}, 940
        s_cselect_b32 s{S_O0}, s{S_O0}, 0x40000000
        s_mov_b32 s{S_A}, 0x05040100
        s_mov_b32 s{S_Bq}, 0x07060302
        s_waitcnt lgkmcnt(0)
        """)
        for u in range(4):
            for k in range(4):
                A(f"v_perm_b32 v{16+4*u+k}, v{130+4*u+(k>>1)}, v{128+4*u+(k>>1)}, s{S_A if k % 2 == 0 else S_Bq}")
            A(f"buffer_store_dwordx4 {vr(16+4*u,4)}, v{V_L16}, s[{S_WS}:{S_WS+3}], s{S_O0} offen sc1\n s_add_u32 s{S_O0}, s{S_O0}, {24*5120}")
        A(f"{Ln}:")
        A.vm += [None] * 4
        A(f"s_mov_b32 s{S_A}, 0x3f803f80\n v_mov_b32 v32, 0")
        for r in range(12): A(f"v_dot2_f32_bf16 v32, v{96+r}, s{S_A}, v32")
        def red32(v, t):
            A("s_nop 2")
            for dpp in ("quad_perm:[1,0,3,2]", "quad_perm:[2,3,0,1]", "row_half_mirror", "row_mirror"):
                A(f"v_add_f32_dpp v{v}, v{v}, v{v} {dpp} row_mask:0xf bank_mask:0xf\n s_nop 1")
            A(f"v_mov_b32 v{t}, v{v}\n s_nop 1\n v_permlane16_swap_b32 v{v}, v{t}\n s_nop 0\n v_add_f32 v{v}, v{v}, v{t}")
        red32(32, 33)
        A(f"v_mul_f32 v32, {-1.0/640.0!r}, v32          ; -mean")
        A(f"s_mov_b32 s{S_A}, 0xffff0000\n v_mov_b32 v34, 0\n v_mov_b32 v35, 0\n v_mov_b32 v36, 0\n v_mov_b32 v37, 0")
        for r in range(12):
            acc = 34 if r < 8 else 36
            t = 38 + 2 * (r & 1)
            A(f"""
            v_lshlrev_b32 v{t}, 16, v{96+r}
            v_and_b32 v{t+1}, s{S_A}, v{96+r}
            v_pk_add_f32 {vr(t,2)}, {vr(t,2)}, v[32:33] op_sel_hi:[1,0]
            v_pk_fma_f32 {vr(acc,2)}, {vr(t,2)}, {vr(t,2)}, {vr(acc,2)}
            """)
        A(f"""
        v_and_b32 v38, 31, v0
        v_cmp_gt_u32 vcc, 16, v38
        v_add_f32 v36, v36, v37
        v_add_f32 v34, v34, v35
        v_cndmask_b32 v36, 0, v36, vcc
        v_add_f32 v34, v34, v36
        """)
        red32(34, 35)
        A(f"""
        v_mul_f32 v34, {1.0/640.0!r}, v34
        v_cvt_pk_bf16_f32 v34, v34, v32
        v_and_b32 v32, s{S_A}, v34
        v_lshlrev_b32 v34, 16, v34
        v_add_f32 v34, 0x3727c5ac, v34         ; + 1e-5
        v_cvt_pk_bf16_f32 v34, v34, v34
        v_lshlrev_b32 v34, 16, v34
        v_sqrt_f32 v34, v34
        s_nop 0
        v_cvt_pk_bf16_f32 v34, v34, v34
        v_lshlrev_b32 v34, 16, v34
        v_rcp_f32 v33, v34
        v_lshrrev_b32 v35, 5, v0
        v_lshlrev_b32 v35, 3, v35
        s_lshl_b32 s{S_A}, s{S_JW}, 4
        s_mov_b32 exec_lo, 1
        s_mov_b32 exec_hi, 1
        """)
        A.vmem(f"buffer_store_dwordx2 v[32:33], v35, s[{S_WS}:{S_WS+3}], s{S_A} offen sc1")
        A(f"""
        s_mov_b64 exec, 1
        v_mov_b32 v36, 0
        s_lshl_b32 s{S_A}, s{S_RT}, 5
        s_add_u32 s{S_A}, s{S_A}, s{S_GID}
        s_lshl_b32 s{S_A}, s{S_A}, 2
        s_add_u32 s{S_A}, s{S_A}, {WS_FLAGS}
        """)
        A.vmem(f"buffer_store_dword v36, v36, s[{S_WS}:{S_WS+3}], s{S_A} offen sc1")
        A(f"""
        s_mov_b64 exec, 0xffff
        v_mov_b32 v36, {SENT:#x}
        v_mov_b32 v37, {SENT:#x}
        v_lshlrev_b32 v38, 3, v0
        s_lshl_b32 s{S_A}, s{S_SU0}, 5
        s_add_u32 s{S_A}, s{S_A}, s{S_RT}
        s_lshl_b32 s{S_A}, s{S_A}, 7
        s_add_u32 s{S_A}, s{S_A}, {WS_FIN}
        """)
        for u in range(nunits):
            A.vmem(f"buffer_store_dwordx2 v[36:37], v38, s[{S_WS}:{S_WS+3}], s{S_A} offen sc1", ('init', u))
            if u + 1 < nunits: A(f"s_add_u32 s{S_A}, s{S_A}, 4096")
        A("s_mov_b64 exec, -1")

    def s_consts(self, nunits, cbase):
        A = self.A
        for u in range(nunits):
            c = cbase[u]
            LAM, CA, L16, L64, L16Q, L512Q = c, c + 2, c + 4, c + 6, c + 8, c + 10
            s = 112 + 3 * u
            A(f"""
            v_lshlrev_b32 v16, 16, v{s}            ; Lambda_re
            v_lshlrev_b32 v17, 16, v{s+1}          ; Lambda_im
            v_lshlrev_b32 v18, 16, v{s+2}
            v_mul_f32 v18, 0x3fb8aa3b, v18
            v_exp_f32 v18, v18
            s_nop 0
            v_cvt_pk_bf16_f32 v18, v18, v18
            v_lshlrev_b32 v18, 16, v18
            v_mul_f32 v19, v18, v16
            v_mul_f32 v20, v18, v17
            v_mul_f32 v19, 0x3fb8aa3b, v19
            v_mul_f32 v20, 0.15915494, v20
            v_exp_f32 v19, v19
            v_rndne_f32 v21, v20
            v_sub_f32 v20, v20, v21
            v_cos_f32 v21, v20
            v_sin_f32 v22, v20
            v_mul_f32 v23, v16, v16
            v_fmac_f32 v23, v17, v17
            v_mul_f32 v{LAM}, v19, v21
            v_mul_f32 v{LAM+1}, v19, v22
            v_rcp_f32 v23, v23
            v_add_f32 v24, -1.0, v{LAM}
            v_mov_b32 v25, v{LAM+1}
            v_add_f32 v23, v23, v23
            v_mul_f32 v26, v16, v23
            v_mul_f32 v27, -v17, v23               ; 2*conj(Lam)/|Lam|^2
            """)
            self.cmul(CA, 24, 26)
            self.cmul(16, LAM, LAM)
            self.cmul(18, 16, 16)
            self.cmul(16, 18, 18)
            self.cmul(L16, 16, 16)
            self.cmul(18, L16, L16)
            self.cmul(20, L16, 18)
            self.cmul(L64, 18, 18)
            self.cmul(16, L64, L64)
            self.cmul(22, 16, 16)
            self.cmul(16, 22, 22)
            self.cmul(22, 16, 16)
            self.cmul(24, 16, 22)
            for k in range(2):
                one = "1.0" if k == 0 else "0"
                A(f"""
                v_cndmask_b32 v{L16Q+k}, {one}, v{L16+k}, s[{S_M1}:{S_M1+1}]
                v_cndmask_b32 v{L16Q+k}, v{L16Q+k}, v{18+k}, s[{S_M2}:{S_M2+1}]
                v_cndmask_b32 v{L16Q+k}, v{L16Q+k}, v{20+k}, s[{S_M3}:{S_M3+1}]
                v_cndmask_b32 v{L512Q+k}, v{24+k}, v{22+k}, s[{S_M1}:{S_M1+1}]
                v_cndmask_b32 v{L512Q+k}, v{L512Q+k}, v{16+k}, s[{S_M2}:{S_M2+1}]
                v_cndmask_b32 v{L512Q+k}, v{L512Q+k}, {one}, s[{S_M3}:{S_M3+1}]
                """)

    def dma_ops(self, s, isx):
        slot = s % 3
        wl = slot * WSLOT
        w, x = [], []
        if isx:
            w.append(([f"s_mov_b32 s{S_O0}, {s*64*3456}", f"s_add_u32 m0, s{S_LW}, {wl + 1024}"], f"buffer_load_dwordx4 v{V_WD0}, s[{S_G}:{S_G+3}], s{S_O0} offen lds"))
            w.append(([], f"buffer_load_dwordx4 v{V_WD1}, s[{S_G}:{S_G+3}], s{S_O0} offen offset:1024 lds"))
            w.append(([f"s_add_u32 m0, s{S_LW}, {wl + 3072}"], f"buffer_load_dwordx4 v{V_WD0}, s[{S_U}:{S_U+3}], s{S_O0} offen lds"))
            w.append(([], f"buffer_load_dwordx4 v{V_WD1}, s[{S_U}:{S_U+3}], s{S_O0} offen offset:1024 lds"))
        for u in range(1 if isx else 3):
            so = S_O1 if u % 2 == 0 else S_O0
            w.append(([f"s_mov_b32 s{so}, {s*128 + u*16*1280}", f"s_add_u32 m0, s{S_LW}, {wl + 1024*u}"], f"buffer_load_dwordx4 v{V_BD}, s[{S_B}:{S_B+3}], s{so} offen lds"))
        for i in range(4):
            so = S_O0 if i % 2 == 0 else S_O1
            x.append(([f"s_mov_b32 s{so}, {s*128 + 4*i*1280}", f"s_add_u32 m0, s{S_LX}, {(s % 2)*XSLOT + i*2048}"], f"buffer_load_dwordx4 v{V_XD0}, s[{S_X}:{S_X+3}], s{so} offen lds"))
            x.append(([], f"buffer_load_dwordx4 v{V_XD1}, s[{S_X}:{S_X+3}], s{so} offen offset:1024 lds"))
        return w, x

    def dma_stage_now(self, s, isx):
        A = self.A
        w, x = self.dma_ops(s, isx)
        for k, (sc, d) in enumerate(w + x):
            for t in reversed(sc): A(t)
            if len(sc) == 1: A("s_nop 0")
            A.vmem(d, ('dma', s, k))
        return ('dma', s, len(w) + len(x) - 1)

    def wreads(self, n, isx):
        NJ = 10 if isx else 6
        step, j = divmod(n, NJ); s, kh = divmod(step, 2); slot = s % 3
        d = WB + (n % 4) * 4
        if not isx or j < 2:
            a = V_BR0 if kh == 0 else V_BR1
            u, c = divmod(j, 2)
            return [(f"ds_read_b128 {vr(d,4)}, v{a} offset:{slot*WSLOT + c*10240 + u*1024}", ('w', n, 0))]
        t, isu = divmod(j - 2, 2)
        off = slot * WSLOT + kh * 10240 + 1024 + isu * 2048
        return [(f"ds_read_b64_tr_b16 {vr(d,2)}, v{V_WR + t} offset:{off}", ('w', n, 0)),
                (f"ds_read_b64_tr_b16 {vr(d+2,2)}, v{V_WR + t} offset:{off + 512}", ('w', n, 1))]

    def xreads(self, step):
        s, kh = divmod(step, 2)
        a = V_XR0 if kh == 0 else V_XR1
        return [(f"ds_read_b128 {vr(XB + (step % 2)*16 + i*4, 4)}, v{a} offset:{(s % 2)*XSLOT + i*2048}", ('x', step, i)) for i in range(4)]

    def w2_load(self, n, j):
        d = (n % 12) * 20 + j * 4
        sc = []
        if j == 0:
            sc = [f"s_add_u32 s{S_KX}, s{S_OOB}, {n*5120}"] if n in (6, 13) else [f"s_mov_b32 s{S_KX}, {n*5120}"]
        if j == 4:
            sc = [f"s_add_u32 s{S_KX}, s{S_KX}, 1024"]
        off = j * 1024 if j < 4 else 3072
        return sc, f"buffer_load_dwordx4 {ar(d,4)}, v{V_L16}, s[{S_W2}:{S_W2+3}], s{S_KX} offen offset:{off} sc1", ('w2', n, j)

    def poll_init_issue(self, A):
        self.srd(S_T0, P_DBG, None, 256)
        A(f"v_and_b32 v{V_P}, 3, v0\n v_lshlrev_b32 v{V_P}, 6, v{V_P}")
        A.vmem(f"buffer_load_dword v95, v{V_P}, s[{S_T0}:{S_T0+3}], 0 offen sc1", 'pollinit')

    def poll_init_check(self, A):
        Lok, Lp = self.lab("iok"), self.lab("ip")
        A.wait_vm(['pollinit'])
        A(f"""
        v_cmp_gt_u32 vcc, 64, v95
        s_mov_b32 s{S_SPIN}, 0
        s_cbranch_vccz {Lok}
        {Lp}:
        buffer_load_dword v95, v{V_P}, s[{S_T0}:{S_T0+3}], 0 offen sc1
        s_add_u32 s{S_SPIN}, s{S_SPIN}, 1
        s_cmp_gt_u32 s{S_SPIN}, {SPIN_MAX}
        s_cbranch_scc1 {Lok}
        s_waitcnt vmcnt(0)
        v_cmp_gt_u32 vcc, 64, v95
        s_nop 0
        s_cbranch_vccnz {Lp}
        {Lok}:
        """)

    def arrive(self, A):
        self.srd(S_T0, P_DBG, None, 256)
        A(f"""
        s_and_b32 s{S_A}, s2, 3
        s_lshl_b32 s{S_A}, s{S_A}, 6
        s_cmp_eq_u32 s{S_WAVE}, 0
        s_cselect_b32 s{S_A}, s{S_A}, 0x40000000
        v_mov_b32 v94, 1
        v_mov_b32 v95, 0
        s_mov_b64 exec, 1
        """)
        A.vmem(f"buffer_atomic_add v94, v95, s[{S_T0}:{S_T0+3}], s{S_A} offen")
        A("s_mov_b64 exec, -1")

    def stage_dma(self, A, nunits):
        A(f"""
        s_lshl_b32 s{S_A}, s{S_RT}, 9
        s_min_u32 s{S_Bq}, s{S_GID}, 26
        s_lshl_b32 s{S_Bq}, s{S_Bq}, 8
        s_add_u32 s{S_C}, s{S_Bq}, {WS_CSG - 512}
        s_add_u32 s{S_D}, s{S_Bq}, {WS_CSU - 768}
        v_mov_b32 v92, s{S_A}
        v_mov_b32 v93, s{S_C}
        v_mov_b32 v94, s{S_D}
        v_cndmask_b32 v92, v92, v93, s[{S_M2}:{S_M2+1}]
        v_cndmask_b32 v92, v92, v94, s[{S_M3}:{S_M3+1}]
        v_add_u32 v92, v92, v{V_L16}
        s_add_u32 m0, s{S_SP}, 4096
        v_lshrrev_b32 v93, 3, v0              ; u
        v_bfe_u32 v94, v0, 2, 1               ; comp
        v_lshlrev_b32 v93, 6, v93
        v_lshl_add_u32 v93, v94, 12, v93
        v_and_b32 v94, 3, v0
        v_lshl_add_u32 v93, v94, 4, v93
        s_lshl_b32 s{S_A}, s{S_SU0}, 6
        s_add_u32 s{S_A}, s{S_A}, {WS_CSB - 1024}
        """)
        A.vmem(f"buffer_load_dwordx4 v92, s[{S_WS}:{S_WS+3}], 0 offen sc1 lds", 'stg0')
        A.vmem(f"buffer_load_dwordx4 v93, s[{S_WS}:{S_WS+3}], s{S_A} offen offset:1024 sc1 lds", 'stg1')

    def main1(self, isx):
        A = self.A
        NJ = 10 if isx else 6
        NF = 20 * NJ
        S = Sched()
        for t, rid in self.xreads(0): S.ds(-1, t, rid)
        for n in range(3):
            for t, rid in self.wreads(n, isx): S.ds(-1, t, rid)
        w2q = [(n, j) for n in range(12) for j in range(5)]
        nd = 13 if isx else 11
        for step in range(20):
            s, kh = divmod(step, 2)
            for j in range(NJ):
                n = step * NJ + j
                w = vr(WB + (n % 4) * 4, 4)
                for i in range(4):
                    x = vr(XB + (step % 2) * 16 + i * 4, 4)
                    acc = vr(accreg(j, i), 4)
                    c = acc if step else "0"
                    isS = (not isx) or j < 2
                    a, b = (x, w) if isS else (w, x)
                    deps = [('x', step, i), ('w', n, 0)] + ([] if isS else [('w', n, 1)])
                    S.mfma(f"v_mfma_f32_16x16x32_bf16 {acc}, {a}, {b}, {c}", deps)
                g0 = n * 4
                if kh == 1 and j == NJ - 3 and s < 9:
                    def bar(A, s=s):
                        A.wait_vm([('dma', s + 1, nd - 1)], force=True)
                        A("s_barrier")
                        if s == 0: self.arrive(A)
                        if s == 6: self.poll_init_issue(A)
                        if s == 7:
                            self.poll_init_check(A)
                            self.stage_dma(A, 1 if isx else 3)
                    S.call(g0 - 1, bar)
                if n + 3 < NF:
                    for k, (t, rid) in enumerate(self.wreads(n + 3, isx)): S.ds(g0 + k, t, rid)
                if j in (NJ - 3, NJ - 2) and step < 19:
                    h = j - (NJ - 3)
                    for k, (t, rid) in enumerate(self.xreads(step + 1)[h*2:h*2 + 2]): S.ds(g0 + 2 + k, t, rid)
            if kh == 0 and s <= 7:
                w, x = self.dma_ops(s + 2, isx)
                base = step * NJ * 4
                if isx:
                    pos = [4*g + 2 for g in (0, 1, 2, 3, 4)] + [4*g + 2 for g in (9, 10, 11, 12, 13, 14, 15, 16)]
                else:
                    pos = [2, 6, 10] + [22, 23, 26, 27, 30, 31, 33, 34]
                for k, ((sc, d), p) in enumerate(zip(w + x, pos)):
                    for kk, t in enumerate(sc): S.scalar(base + p - len(sc) + kk, t)
                    S.vmem(base + p, d, ('dma', s + 2, k))
            if s >= 8:
                for j in range(NJ):
                    if j in (NJ - 3, NJ - 2) and step < 19: continue
                    n_, j_ = w2q.pop(0)
                    sc, t, rid = self.w2_load(n_, j_)
                    g = (step * NJ + j) * 4 + 2
                    for tt in sc: S.scalar(g - 1, tt)
                    S.vmem(g, t, rid)
        S.emit(A)
        A("s_barrier")
        self.w2q = w2q

    def w2_more(self, k):
        A = self.A
        for _ in range(min(k, len(self.w2q))):
            n_, j_ = self.w2q.pop(0)
            sc, t, rid = self.w2_load(n_, j_)
            for tt in sc: A(tt)
            A.vmem(t, rid)

    def s_stats_read(self, regs):
        A = self.A
        A.wait_vm(['stg1'])
        A(f"v_lshrrev_b32 v1, 4, v0\n v_lshlrev_b32 v1, 7, v1\n v_add_u32 v1, s{S_SP}, v1")
        A(f"v_and_b32 v2, 15, v0\n v_lshl_add_u32 v2, v2, 2, s{S_SP}")
        for i in range(4):
            A.ds(f"ds_read_b128 {vr(regs[i],4)}, v1 offset:{4096 + 32*i}", ('ss', i, 0))
            A.ds(f"ds_read_b128 {vr(regs[i]+4,4)}, v1 offset:{4096 + 32*i + 16}", ('ss', i, 1))

    def s_part_a(self, u, ub, c, st, T, CQ):
        A = self.A
        LAM, CA, L16 = c, c + 2, c + 4
        A.ds(f"ds_read_b32 v{T}, v2 offset:{5120 + 128*u}", ('csb', u, 0))
        A.ds(f"ds_read_b32 v{T+1}, v2 offset:{5120 + 128*u + 64}", ('csb', u, 1))
        A.wait_lg([('csb', u, 1)])
        CCS = T + 2
        self.cmul(CCS, CA, T)
        for i in range(4):
            re, im = accreg(2*u, i), accreg(2*u + 1, i)
            for k in range(4):
                for r in range(4):
                    U = vr(ub + 2*(4*i + r), 2); sp = vr(st[i] + 2*r, 2); b = r & 1
                    if k == 0: A(f"v_pk_mul_f32 {U}, {vr(CCS,2)}, {sp} op_sel_hi:[1,0]")
                    elif k == 1: A(f"v_pk_fma_f32 {U}, {vr(CA,2)}, {vr(re + (r & 2),2)}, {U} op_sel:[0,{b},0] op_sel_hi:[1,{b},1]")
                    elif k == 2: A(f"v_pk_fma_f32 {U}, {vr(CA,2)}, {vr(im + (r & 2),2)}, {U} op_sel:[1,{b},0] op_sel_hi:[0,{b},1] neg_lo:[1,0,0]")
                    else: A(f"v_pk_mul_f32 {U}, {U}, {sp} op_sel:[0,1] op_sel_hi:[1,1]")
        cur = ub
        for tau in range(1, 16):
            nxt = T + 2 * (tau & 1)
            self.cfma(nxt, LAM, cur, ub + 2*tau)
            cur = nxt
        F, B, C, D = cur, T + 4, T + 6, T + 8
        A(f"v_mov_b32 v{B}, v{F}\n v_mov_b32 v{B+1}, v{F+1}\n s_nop 0")
        A(f"v_permlane16_swap_b32 v{F}, v{B}\n v_permlane16_swap_b32 v{F+1}, v{B+1}")
        A(f"v_mov_b32 v{C}, v{F}\n v_mov_b32 v{D}, v{B}\n v_mov_b32 v{C+1}, v{F+1}\n v_mov_b32 v{D+1}, v{B+1}\n s_nop 0")
        A(f"v_permlane32_swap_b32 v{F}, v{C}\n v_permlane32_swap_b32 v{B}, v{D}\n v_permlane32_swap_b32 v{F+1}, v{C+1}\n v_permlane32_swap_b32 v{B+1}, v{D+1}")
        self.cfma(B, L16, F, B)
        self.cfma(C, L16, B, C)
        self.cfma(D, L16, C, D)
        A(f"""
        s_add_u32 s{S_A}, s{S_SU0}, {u}
        s_lshl_b32 s{S_A}, s{S_A}, 5
        s_add_u32 s{S_A}, s{S_A}, s{S_RT}
        s_lshl_b32 s{S_A}, s{S_A}, 7
        s_add_u32 s{S_A}, s{S_A}, {WS_FIN}
        v_lshlrev_b32 v{T}, 3, v0
        s_mov_b64 exec, 0xffff
        """)
        A.vmem(f"buffer_store_dwordx2 {vr(D,2)}, v{T}, s[{S_WS}:{S_WS+3}], s{S_A} offen sc1")
        A("s_mov_b64 exec, -1")
        for k in range(2):
            A(f"""
            v_cndmask_b32 v{CQ+k}, 0, v{F+k}, s[{S_M1}:{S_M1+1}]
            v_cndmask_b32 v{CQ+k}, v{CQ+k}, v{B+k}, s[{S_M2}:{S_M2+1}]
            v_cndmask_b32 v{CQ+k}, v{CQ+k}, v{C+k}, s[{S_M3}:{S_M3+1}]
            """)

    def fin_addr(self, VA):
        A = self.A
        A(f"""
        v_lshrrev_b32 v{VA}, 4, v0
        v_lshlrev_b32 v{VA}, 10, v{VA}
        v_and_b32 v{VA+1}, 15, v0
        v_lshl_add_u32 v{VA}, v{VA+1}, 3, v{VA}
        s_lshl_b32 s{S_A}, s{S_RT}, 7
        s_sub_u32 s{S_A}, s{S_A}, 4096
        v_add_u32 v{VA}, s{S_A}, v{VA}
        """)
        for e in range(1, 8): A(f"v_add_u32 v{VA+e}, {128*e}, v{VA}")

    def fin_issue(self, u, VA, R):
        A = self.A
        A(f"s_add_u32 s{S_A}, s{S_SU0}, {u}\n s_lshl_b32 s{S_A}, s{S_A}, 12\n s_add_u32 s{S_A}, s{S_A}, {WS_FIN}")
        self.srd(S_T0, P_WS, f"s{S_A}", 4096)
        for e in range(8):
            A.vmem(f"buffer_load_dwordx2 {vr(R + 2*e, 2)}, v{VA+e}, s[{S_T0}:{S_T0+3}], 0 offen sc1", ('fin', u, e))

    def s_part_b(self, u, ub, c, CQ, VA, R, T, hoff_reg):
        A = self.A
        LAM, L64, L16Q, L512Q = c, c + 6, c + 8, c + 10
        Lh, Lok = self.lab("fh"), self.lab("fok")
        A.wait_vm([('fin', u, 7)])
        A(f"s_mov_b32 s{S_SPIN}, 0\n {Lh}:")
        cur = R
        for e in range(1, 8):
            nxt = T + 2 * (e & 1)
            self.cfma(nxt, L64, cur, R + 2*e)
            cur = nxt
        A(f"v_cmp_u_f32 vcc, v{cur}, v{cur+1}\n s_mov_b32 s{S_A}, {SENT:#x}\n s_cbranch_vccz {Lok}")
        A(f"s_mov_b64 s[{S_C}:{S_C+1}], 0")
        for k in range(16):
            A(f"v_cmp_eq_u32 vcc, s{S_A}, v{R+k}\n s_or_b64 s[{S_C}:{S_C+1}], s[{S_C}:{S_C+1}], vcc")
        A(f"s_cbranch_scc0 {Lok}\n s_add_u32 s{S_SPIN}, s{S_SPIN}, 1\n s_cmp_gt_u32 s{S_SPIN}, {SPIN_MAX}\n s_cbranch_scc1 {Lok}")
        for e in range(8):
            A(f"buffer_load_dwordx2 {vr(R + 2*e, 2)}, v{VA+e}, s[{S_T0}:{S_T0+3}], 0 offen sc1")
        A(f"s_waitcnt vmcnt(0)\n s_branch {Lh}\n {Lok}:")
        G, G2 = T, T + 4
        self.cmul(G, L512Q, cur)
        A(f"v_mov_b32 v{G2}, v{G}\n v_mov_b32 v{G2+1}, v{G+1}\n s_nop 0")
        A(f"v_permlane16_swap_b32 v{G}, v{G2}\n v_permlane16_swap_b32 v{G+1}, v{G2+1}\n s_nop 0")
        A(f"v_pk_add_f32 {vr(G,2)}, {vr(G,2)}, {vr(G2,2)}")
        A(f"v_mov_b32 v{G2}, v{G}\n v_mov_b32 v{G2+1}, v{G+1}\n s_nop 0")
        A(f"v_permlane32_swap_b32 v{G}, v{G2}\n v_permlane32_swap_b32 v{G+1}, v{G2+1}\n s_nop 0")
        A(f"v_pk_add_f32 {vr(G,2)}, {vr(G,2)}, {vr(G2,2)}")
        self.cfma(CQ, L16Q, G, CQ)
        prev = CQ
        for tau in range(16):
            U = ub + 2 * tau
            self.cfma(U, LAM, prev, U)
            if tau > 0:
                i, r = divmod(tau - 1, 4)
                A(f"v_cvt_pk_bf16_f32 v{R + tau - 1}, v{prev}, -v{prev+1}")
                A.ds(f"ds_write_b32 v3, v{R + tau - 1} offset:{i*1024 + r*64}", ('tw', u, tau - 1))
            prev = U
        A(f"v_cvt_pk_bf16_f32 v{R + 15}, v{prev}, -v{prev+1}")
        A.ds(f"ds_write_b32 v3, v{R + 15} offset:{3*1024 + 3*64}", ('tw', u, 15))
        for i in range(4):
            A.ds(f"ds_read_b128 {vr(ub + 4*i, 4)}, v4 offset:{i*1024}", ('tr', u, i))
        for i in range(4):
            A.wait_lg([('tr', u, i)])
            A.vmem(f"buffer_store_dwordx4 {vr(ub + 4*i, 4)}, v{V_L16}, s[{S_WS}:{S_WS+3}], s{hoff_reg} offen offset:{i*1024} sc1", ('hs', u, i))

    def s_tr_addr(self):
        self.A(f"""
        v_lshrrev_b32 v3, 4, v0
        v_and_b32 v5, 15, v0
        v_lshlrev_b32 v4, 4, v3
        v_lshl_add_u32 v4, v5, 6, v4
        v_add_u32 v4, s{S_SP}, v4
        v_lshlrev_b32 v3, 8, v3
        v_lshl_add_u32 v3, v5, 2, v3
        v_add_u32 v3, s{S_SP}, v3              ; write: q*256 + p*4
        """)

    def s_hoff(self, u, reg):
        self.A(f"""
        s_add_u32 s{S_A}, s{S_SU0}, {u}
        s_and_b32 s{S_Bq}, s{S_A}, 3
        s_mul_i32 s{S_Bq}, s{S_Bq}, 24
        s_lshr_b32 s{S_A}, s{S_A}, 2
        s_add_u32 s{S_A}, s{S_A}, s{S_Bq}
        s_mul_i32 s{S_Bq}, s{S_RT}, 96
        s_add_u32 s{S_A}, s{S_A}, s{S_Bq}
        s_lshl_b32 s{S_A}, s{S_A}, 12
        s_add_u32 s{reg}, s{S_A}, {WS_H + 14*4096}
        """)

    def f_setup(self, PS, QS):
        A = self.A
        A(f"""
        v_bfe_u32 v5, v0, 2, 2
        v_and_b32 v6, 3, v0
        v_lshl_add_u32 v5, v5, 4, v6
        v_lshl_add_u32 v5, v5, 3, s{S_SP}
        v_lshrrev_b32 v6, 4, v0
        v_lshl_add_u32 v6, v6, 4, s{S_SP}
        """)
        for i in range(4): A.ds(f"ds_read_b64 {vr(PS + 2*i, 2)}, v5 offset:{4096 + 32*i}", ('fs', i))
        A(f"""
        s_and_b32 s{S_A}, s{S_GID}, 3
        s_mul_i32 s{S_A}, s{S_A}, 24
        s_lshr_b32 s{S_Bq}, s{S_GID}, 2
        s_add_u32 s{S_A}, s{S_A}, s{S_Bq}
        s_mul_i32 s{S_Bq}, s{S_RT}, 96
        s_add_u32 s{S_A}, s{S_A}, s{S_Bq}
        s_lshl_b32 s{S_A}, s{S_A}, 12
        s_add_u32 s{S_O0}, s{S_A}, {WS_H}
        s_add_u32 s{S_O1}, s{S_O0}, {7*4096}
        """)
        A.wait_lg([('fs', 3)])
        for i in range(4): A(f"v_mul_f32 v{QS+i}, v{PS+2*i+1}, v{PS+2*i+1}")
        for i in range(4): A(f"v_rcp_f32 v{QS+i}, v{QS+i}")
        for i in range(4): A(f"v_mul_f32 v{PS+2*i+1}, 0xbfb8aa3b, v{PS+2*i+1}")

    def f_cs_read(self, jp, CS):
        A = self.A
        for h in range(2):
            t = 2 * jp + h
            A.ds(f"ds_read_b128 {vr(CS + 8*h, 4)}, v6 offset:{4096 + 512 + 64*t}", ('fc', jp, h, 0))
            A.ds(f"ds_read_b128 {vr(CS + 8*h + 4, 4)}, v6 offset:{4096 + 768 + 64*t}", ('fc', jp, h, 1))

    def f_part(self, jp, PS, QS, CS, E, extra=None):
        A = self.A
        A.wait_lg([('fc', jp, 1, 1)])
        for i in range(4):
            items = []
            for h in range(2):
                t = 2 * jp + h
                for rp in range(2):
                    items.append((accreg(2 + 2*t, i) + 2*rp, accreg(3 + 2*t, i) + 2*rp, CS + 8*h + 2*rp, CS + 8*h + 4 + 2*rp, E + 2*(2*h + rp)))
            Pp = vr(PS + 2*i, 2); Q = vr(QS + (i & 2), 2); b = i & 1
            O = accreg(2 + 4*jp, i)
            for G, U, cg, cu, e in items: A(f"v_pk_fma_f32 {vr(G,2)}, {vr(cg,2)}, {Pp}, {vr(G,2)} op_sel_hi:[1,0,1]")
            for G, U, cg, cu, e in items: A(f"v_pk_mul_f32 {vr(e,2)}, {vr(G,2)}, {Pp} op_sel:[0,1] op_sel_hi:[1,1]")
            for G, U, cg, cu, e in items: A(f"v_exp_f32 v{e}, v{e}\n v_exp_f32 v{e+1}, v{e+1}")
            for G, U, cg, cu, e in items: A(f"v_pk_fma_f32 {vr(U,2)}, {vr(cu,2)}, {Pp}, {vr(U,2)} op_sel_hi:[1,0,1]")
            for G, U, cg, cu, e in items: A(f"v_pk_fma_f32 {vr(e,2)}, {vr(e,2)}, {Q}, {Q} op_sel:[0,{b},{b}] op_sel_hi:[1,{b},{b}]")
            for G, U, cg, cu, e in items: A(f"v_rcp_f32 v{e}, v{e}\n v_rcp_f32 v{e+1}, v{e+1}")
            for G, U, cg, cu, e in items: A(f"v_pk_mul_f32 {vr(U,2)}, {vr(U,2)}, {vr(G,2)}")
            for G, U, cg, cu, e in items: A(f"v_pk_mul_f32 {vr(U,2)}, {vr(U,2)}, {vr(e,2)}")
            for k, (G, U, cg, cu, e) in enumerate(items): A(f"v_cvt_pk_bf16_f32 v{O+k}, v{U}, v{U+1}")
            A.vmem(f"buffer_store_dwordx4 {vr(O,4)}, v{V_L16}, s[{S_WS}:{S_WS+3}], s{S_O0 if jp == 0 else S_O1} offen offset:{i*1024} sc1", ('hf', jp, i))
            if extra: extra(jp, i)

    def publish(self):
        A = self.A
        A(f"""
        s_lshl_b32 s{S_A}, s{S_RT}, 5
        s_add_u32 s{S_A}, s{S_A}, s{S_GID}
        s_lshl_b32 s{S_A}, s{S_A}, 2
        s_add_u32 s{S_A}, s{S_A}, {WS_FLAGS}
        v_mov_b32 v1, 1
        v_mov_b32 v2, 0
        """)
        A.drain_vm()
        A("s_mov_b64 exec, 1")
        A.vmem(f"buffer_store_dword v1, v2, s[{S_WS}:{S_WS+3}], s{S_A} offen sc1")
        A("s_mov_b64 exec, -1")

    def body_x(self):
        A = self.A
        cb = [64]
        self.job_loads(1)
        d0 = self.dma_stage_now(0, True)
        self.job_compute(1, cb)
        self.dma_stage_now(1, True)
        self.s_consts(1, cb)
        self.stamp(1)
        A.wait_vm([d0], force=True)
        A("s_barrier")
        self.stamp(2)
        self.main1(True)
        self.stamp(3)
        st = [48, 56, 76, 84]
        self.s_stats_read(st)
        A.wait_lg([('ss', 3, 1)])
        CQ = 92
        self.s_part_a(0, 16, 64, st, 4, CQ)
        self.w2_more(6)
        PS, QS, CS, E = 48, 56, 96, 112
        self.f_setup(PS, QS)
        self.f_cs_read(0, CS)
        VA, R = 76, 128
        def extra(jp, i):
            self.w2_more(3)
            if jp == 1 and i == 1:
                self.fin_addr(VA)
                self.fin_issue(0, VA, 144)
        self.f_part(0, PS, QS, CS, E, extra)
        self.f_cs_read(1, CS)
        self.f_part(1, PS, QS, CS, E, extra)
        self.stamp(4)
        self.s_tr_addr()
        self.s_hoff(0, S_O0)
        self.s_part_b(0, 16, 64, CQ, VA, 144, 84, S_O0)
        self.w2_more(100)
        self.stamp(5)
        self.publish()

    def body_y(self):
        A = self.A
        cb = [64, 192, 204]
        self.colsum_job()
        self.job_loads(3)
        d0 = self.dma_stage_now(0, False)
        self.job_compute(3, cb)
        self.dma_stage_now(1, False)
        self.s_consts(3, cb)
        self.stamp(1)
        A.wait_vm([d0], force=True)
        A("s_barrier")
        self.stamp(2)
        self.main1(False)
        self.stamp(3)
        st = [48, 56, 76, 84]
        self.s_stats_read(st)
        A.wait_lg([('ss', 3, 1)])
        ubs = [16, 96, 128]
        CQs = [216, 218, 220]
        for u in range(3):
            self.s_part_a(u, ubs[u], cb[u], st, 224, CQs[u])
            self.w2_more(8)
        self.w2_more(100)
        self.stamp(4)
        VA = 76
        self.fin_addr(VA)
        self.s_tr_addr()
        Ld = self.lab("yd")
        for u in range(3):
            if u: A(f"s_add_u32 s{S_A}, s{S_SU0}, {u}\n s_cmp_ge_u32 s{S_A}, 40\n s_cbranch_scc1 {Ld}")
            self.fin_issue(u, VA, 160)
            self.s_hoff(u, S_O0)
            self.s_part_b(u, ubs[u], cb[u], CQs[u], VA, 160, 84, S_O0)
        A(f"{Ld}:")
        self.stamp(5)
        self.publish()

    def phase2(self):
        A = self.A
        HD = 6
        HB, AC2, BS = 80, 176, 16
        A.vm = [('w2', n, j) for n in range(12) for j in range(5)] + ['flagst']; A.vm_done = 60
        A.lg = []; A.lg_done = 0
        A(f"""
        v_lshrrev_b32 v1, 2, v0               ; rho
        v_and_b32 v2, 3, v0                   ; c
        v_lshrrev_b32 v3, 2, v1
        v_and_b32 v4, 3, v1
        v_lshl_add_u32 v3, v3, 4, v4
        s_lshl_b32 s{S_A}, s{S_WAVE}, 2
        s_lshl_b32 s{S_Bq}, s{S_RT2}, 6
        s_add_u32 s{S_A}, s{S_A}, s{S_Bq}
        v_add_u32 v3, s{S_A}, v3
        v_lshlrev_b32 v5, 3, v3
        s_mul_i32 s{S_A}, s{S_CT}, 160
        v_lshl_add_u32 v6, v2, 3, s{S_A}
        v_mul_u32_u24 v7, 1280, v3
        v_add_u32 v7, v7, v6                  ; x offset
        v_lshlrev_b32 v8, 1, v7
        """)
        self.srd(S_T0, P_X, None, 2048 * 1280)
        self.srd(S_T1, P_DSK, None, 1280)
        A.vmem(f"buffer_load_dwordx2 v[36:37], v5, s[{S_WS}:{S_WS+3}], 0 offen sc1", 'e_st')
        for j in range(5):
            A.vmem(f"buffer_load_dwordx2 {vr(40 + 2*j, 2)}, v7, s[{S_T0}:{S_T0+3}], 0 offen offset:{32*j}", ('e_x', j))
            A.vmem(f"buffer_load_dwordx2 {vr(50 + 2*j, 2)}, v6, s[{S_T1}:{S_T1+3}], 0 offen offset:{32*j}", ('e_d', j))
        Lp, Lok = self.lab("hp"), self.lab("hok")
        A(f"""
        v_and_b32 v9, 31, v0
        v_lshlrev_b32 v9, 2, v9
        s_lshl_b32 s{S_C}, s{S_RT2}, 7
        s_add_u32 s{S_C}, s{S_C}, {WS_FLAGS}
        """)
        A(f"""
        v_and_b32 v10, 15, v0
        v_lshrrev_b32 v11, 4, v0
        v_bfe_u32 v12, v0, 1, 2
        v_xor_b32 v11, v11, v12
        v_mul_u32_u24 v10, 320, v10
        v_lshl_add_u32 v10, v11, 4, v10
        s_mul_i32 s{S_A}, s{S_WAVE}, 20480
        v_add_u32 v10, s{S_A}, v10
        v_bfe_u32 v12, v1, 1, 2
        v_xor_b32 v12, v12, v2
        v_mul_u32_u24 v11, 320, v1
        v_lshl_add_u32 v11, v12, 4, v11
        s_mul_i32 s{S_A}, s{S_WAVE}, 5120
        v_add_u32 v11, s{S_A}, v11
        v_add_u32 v12, 61440, v11             ; wave 3
        s_mov_b32 s{S_A}, 0xffff0000
        """)
        A.wait_vm([('e_d', 4)])
        for j in range(5):
            for h in range(2):
                xr, dr, o = 40 + 2*j + h, 50 + 2*j + h, BS + 4*j + 2*h
                A(f"""
                v_lshlrev_b32 v{o}, 16, v{xr}
                v_and_b32 v{o+1}, s{S_A}, v{xr}
                v_lshlrev_b32 v60, 16, v{dr}
                v_and_b32 v61, s{S_A}, v{dr}
                v_pk_add_f32 v[62:63], {vr(o,2)}, v[36:37] op_sel_hi:[1,0]
                v_pk_mul_f32 v[62:63], v[62:63], v[36:37] op_sel:[0,1] op_sel_hi:[1,1]
                v_pk_fma_f32 {vr(o,2)}, v[62:63], v[60:61], {vr(o,2)}
                """)
        self.srd(S_T0, P_OUT, None, 2048 * 2560)
        A(f"""
        s_mov_b32 s{S_SPIN}, 0
        {Lp}:
        buffer_load_dword v13, v9, s[{S_WS}:{S_WS+3}], s{S_C} offen sc1
        s_add_u32 s{S_SPIN}, s{S_SPIN}, 1
        s_cmp_gt_u32 s{S_SPIN}, {SPIN_MAX}
        s_cbranch_scc1 {Lok}
        s_waitcnt vmcnt(0)
        v_cmp_ne_u32 vcc, 1, v13
        s_nop 0
        s_cbranch_vccnz {Lp}
        {Lok}:
        """)
        self.stamp(6)
        def h_load(n, i):
            sc = []
            so = S_O0 if n % 2 == 0 else S_O1
            if i == 0:
                sc = [f"s_add_u32 s{so}, s{S_OOB}, {n*4096}"] if n in (6, 13) else [f"s_mov_b32 s{so}, {n*4096}"]
            d = HB + (n % HD) * 16 + 4 * i
            return sc, f"buffer_load_dwordx4 {vr(d,4)}, v{V_L16}, s[{S_H}:{S_H+3}], s{so} offen offset:{i*1024} sc1", ('h', n, i)
        for n in range(HD - 1):
            for i in range(4):
                sc, t, rid = h_load(n, i)
                for tt in sc: A(tt)
                A.vmem(t, rid)
        S = Sched()
        NT = 3
        def mf(n, i, j):
            acc = vr(AC2 + (j*4 + i)*4, 4)
            c = acc if n else "0"
            return S.mfma(f"v_mfma_f32_16x16x32_bf16 {acc}, {ar((n % 12)*20 + 4*j, 4)}, {vr(HB + (n % HD)*16 + 4*i, 4)}, {c}", (), [('h', n, i), ('w2', n, j)])
        for n in range(24 - NT):
            g0 = len(S.m)
            for i in range(4):
                for j in range(5): mf(n, i, j)
            ops = []
            if n + HD - 1 < 24: ops += [h_load(n + HD - 1, i) for i in range(4)]
            if n >= 1 and n + 11 < 24: ops += [self.w2_load(n + 11, j) for j in range(5)]
            for k, (sc, t, rid) in enumerate(ops):
                g = g0 + 1 + 2 * k
                for tt in sc: S.scalar(g - 1, tt)
                S.vmem(g, t, rid)
        pend = []
        for i in range(4):
            for j in range(5):
                for n in range(24 - NT, 24): g = mf(n, i, j)
                pend.append((g, i, j))
        nm = len(S.m)
        late = []
        for g, i, j in pend:
            t = f"ds_write_b128 v10, {vr(AC2 + (j*4 + i)*4, 4)} offset:{i*5120 + j*64}"
            if g + 8 < nm: S.ds(g + 8, t, ('pw', i, j))
            else: late.append((t, ('pw', i, j)))
        S.emit(A)
        A("s_nop 7")
        for t, rid in late: A.ds(t, rid)
        A.drain_lg()
        A("s_barrier")
        self.stamp(7)
        for j in range(5):
            for w in range(4):
                d = 80 + (j*4 + w) * 4
                if w < 3: A.ds(f"ds_read_b128 {vr(d,4)}, v11 offset:{w*20480 + j*64}", ('pr', j, w))
                else: A.ds(f"ds_read_b128 {vr(d,4)}, v12 offset:{j*64}", ('pr', j, w))
        for j in range(5):
            A.wait_lg([('pr', j, 3)])
            d = 80 + j * 16; o = BS + 4 * j
            for h in (0, 2):
                A(f"v_pk_add_f32 {vr(d+h,2)}, {vr(d+h,2)}, {vr(d+4+h,2)}\n v_pk_add_f32 {vr(d+8+h,2)}, {vr(d+8+h,2)}, {vr(d+12+h,2)}")
            for h in (0, 2):
                A(f"v_pk_add_f32 {vr(o+h,2)}, {vr(o+h,2)}, {vr(d+h,2)}")
            for h in (0, 2):
                A(f"v_pk_add_f32 {vr(o+h,2)}, {vr(o+h,2)}, {vr(d+8+h,2)}")
            A.vmem(f"buffer_store_dwordx4 {vr(o,4)}, v8, s[{S_T0}:{S_T0+3}], 0 offen offset:{64*j} sc1")
        if self.prof:
            self.stamp(8)
            A.drain_vm()
            self.stamp(9)
            A(f"s_lshl_b32 s{S_A}, s{S_JW}, 8\n s_add_u32 s{S_A}, s{S_A}, {WS_PROF}\n v_lshlrev_b32 v1, 2, v0")
            A(f"buffer_store_dword v{self.vprof}, v1, s[{S_WS}:{S_WS+3}], s{S_A} offen")
        if self.amp >= 0:
            A(f"""
            v_readlane_b32 s{S_A}, v{self.vprof}, 0
            v_readlane_b32 s{S_Bq}, v{self.vprof}, {self.amp}
            v_readlane_b32 s{S_C}, v{self.vprof}, {self.amp0}
            s_nop 4
            s_sub_u32 s{S_Bq}, s{S_Bq}, s{S_C}
            s_mul_i32 s{S_Bq}, s{S_Bq}, {self.ampk}
            """)
            if self.who == 3: A(f"s_cmp_eq_u32 s{S_JW}, 36\n s_cselect_b32 s{S_Bq}, s{S_Bq}, 0")
            elif self.who: A(f"s_cmp_{'lt' if self.who == 1 else 'ge'}_u32 s{S_GID}, 27\n s_cselect_b32 s{S_Bq}, s{S_Bq}, 0")
            A(f"""
            s_add_u32 s{S_Bq}, s{S_Bq}, 6000
            L_amp:
            s_memrealtime s[{S_ST}:{S_ST+1}]
            s_waitcnt lgkmcnt(0)
            s_sub_u32 s{S_C}, s{S_ST}, s{S_A}
            s_cmp_lt_u32 s{S_C}, s{S_Bq}
            s_cbranch_scc1 L_amp
            """)

    def build(self):
        A = self.A
        self.vprof = 79 if False else 15
        if self.prof:
            global V_P
            V_P = 94
        self.prologue()
        if self.probe:
            ptr = {1: P_WD, 2: P_WS, 3: P_X, 4: P_OUT}[self.probe]
            self.srd(S_T0, ptr, None, 2097152)
            A(f"s_lshl_b32 s{S_A}, s{S_JW}, 11\n v_mov_b32 v16, 0")
            self.stamp(10)
            for k in range(3):
                A(f"buffer_load_dword v17, v16, s[{S_T0}:{S_T0+3}], s{S_A} offen offset:{k*512}\n s_waitcnt vmcnt(0)")
                self.stamp(11 + k)
        A(f"s_cmp_ge_u32 s{S_GID}, 27\n s_cbranch_scc1 L_y")
        snap = A.snapshot()
        self.body_x()
        A("L_p2:")
        self.phase2()
        A("L_end:\n s_endpgm")
        A.restore(snap)
        A("L_y:")
        self.body_y()
        A("s_branch L_p2")
        head = open("cdna_kernels/" + NAME + ".s.ref").read().split("; Override launch")[0]
        return f"""{head}; One persistent launch: 256 workgroups x 4 waves, one per CU (file generated by a script).
; @launch grid=(256,1,1) block=(256,1,1) lds={LDS_BYTES}
.amdgcn_target "amdgcn-amd-amdhsa--gfx950"
.text
.globl {KNAME}
.p2align 8
.type {KNAME},@function
{KNAME}:
{A.text()}
.section .rodata,"a"
.p2align 6
.amdhsa_kernel {KNAME}
  .amdhsa_next_free_vgpr 512
  .amdhsa_next_free_sgpr 102
  .amdhsa_accum_offset 256
  .amdhsa_group_segment_fixed_size 0
  .amdhsa_kernarg_size 128
  .amdhsa_user_sgpr_count 2
  .amdhsa_user_sgpr_kernarg_segment_ptr 1
  .amdhsa_system_sgpr_workgroup_id_x 1
  .amdhsa_float_denorm_mode_32 3
.end_amdhsa_kernel
"""


if __name__ == "__main__":
    out = sys.argv[1] if len(sys.argv) > 1 else "k.s"
    kw = {}
    for a in sys.argv[2:]:
        k, v = a.split("=")
        kw[k] = int(v)
    open(out, "w").write(Gen(**kw).build())
```
